```python
import torch

def _softmax(x, axis=-1):
    return torch.softmax(x, dim=axis)
def _gelu(x):
    return torch.nn.functional.gelu(x, approximate="tanh")
def _silu(x):
    return torch.nn.functional.silu(x)
def _sigmoid(x):
    return torch.sigmoid(x)
def _layernorm(x, axis=-1, eps=1e-5):
    m = x.mean(dim=axis, keepdim=True)
    v = x.var(dim=axis, keepdim=True, unbiased=False)
    return (x - m) / torch.sqrt(v + eps)
def _scatter_add(tgt, idx, src, axis=0):
    return tgt.clone().index_add_(axis, idx, src)
def _segment_sum(src, seg, n):
    out = torch.zeros((n,) + src.shape[1:], dtype=src.dtype)
    return out.index_add_(0, seg, src)
def _pad(x, pw):
    flat = tuple(v for pair in reversed(pw) for v in pair)
    return torch.nn.functional.pad(x, flat)

kernel_name = 'parallel_sum__mha_block__mixer_token_mlp__prompt'

def setup_inputs():

    _w = (lambda a: (lambda t: t.to(torch.bfloat16) if t.is_floating_point() else t)(torch.as_tensor(a)))
    def _A_setup():
        B, S, D, H = 1, 2048, 640, 32
        return {
            "x": _w((lambda *s: torch.randn(*s, dtype=torch.bfloat16) * 0.05)(B, S, D)),
            "wqkv": _w((lambda *s: torch.randn(*s, dtype=torch.bfloat16) * 0.05)(D, 3 * D)),
            "wo": _w((lambda *s: torch.randn(*s, dtype=torch.bfloat16) * 0.05)(D, D)),
        }
    _A_in = _A_setup()

    def _B_setup():
        B, S, D, F = 1, 2048, 640, 1536
        return {
            "x": _w((lambda *s: torch.randn(*s, dtype=torch.bfloat16) * 0.05)(B, S, D)),
            "w1": _w((lambda *s: torch.randn(*s, dtype=torch.bfloat16) * 1.6)(S, F) * (S ** -0.5)),
            "b1": _w((lambda *s: torch.randn(*s, dtype=torch.bfloat16) * 12.8)(F) * 0.02),
            "w2": _w((lambda *s: torch.randn(*s, dtype=torch.bfloat16) * 0.8)(F, S) * (F ** -0.5)),
            "b2": _w((lambda *s: torch.randn(*s, dtype=torch.bfloat16) * 12.8)(S) * 0.02),
        }
    _B_in = _B_setup()

    return {
        "A_x": _A_in["x"],
        "A_wqkv": _A_in["wqkv"],
        "A_wo": _A_in["wo"],
        "B_x": _B_in["x"],
        "B_w1": _B_in["w1"],
        "B_b1": _B_in["b1"],
        "B_w2": _B_in["w2"],
        "B_b2": _B_in["b2"],
    }

def reference(A_x, A_wqkv, A_wo, B_x, B_w1, B_b1, B_w2, B_b2):
    def _A_ref(x, wqkv, wo):
        B, S, D = x.shape
        H = 32
        Dh = D // H
        qkv = (lambda x, *d: x.permute(*d))((x @ wqkv).reshape(B, S, 3, H, Dh), 2, 0, 3, 1, 4)
        q, k, v = qkv[0], qkv[1], qkv[2]
        scores = torch.einsum("bhqd,bhkd->bhqk", q, k) * (Dh ** -0.5)
        p = _softmax(scores, axis=-1)
        o = torch.einsum("bhqk,bhkd->bhqd", p, v)
        return (lambda x, *d: x.permute(*d))(o, 0, 2, 1, 3).reshape(B, S, D) @ wo

    def _B_ref(x, w1, b1, w2, b2):
        B, S, D = x.shape
        h = _layernorm(x, axis=-1)
        u = torch.einsum("bsd,sf->bdf", h, w1) + b1
        u = _gelu(u)
        y = torch.einsum("bdf,fs->bds", u, w2) + b2
        return (lambda x, *d: x.permute(*d))(y, 0, 2, 1)

    x = A_x
    xn = _layernorm(x, axis=-1)
    return x + _A_ref(xn, A_wqkv, A_wo) + _B_ref(xn, B_w1, B_b1, B_w2, B_b2)
```

```python
import re
class Asm:
    def __init__(self):
        self.lines = []
    def __call__(self, s):
        for l in s.split("\n"):
            l = l.strip()
            if l: self.lines.append(l)
    def label(self, n): self.lines.append(n + ":")
    def nop(self, n):
        while n > 0:
            k = min(n, 16); self.lines.append(f"s_nop {k-1}"); n -= k
    diag = False
    def stamp(self, i, real=False):
        if self.diag:
            self.lines.append(f"s_mem{'real' if real else ''}time s[{80+2*i}:{81+2*i}]")
    def dump_stamps(self, n, ws_srd, sW, base, wave=None):
        if not self.diag: return
        L = self.lines.append
        L("s_waitcnt lgkmcnt(0)")
        L("s_mov_b64 exec, 1")
        L(f"s_lshl_b32 s100, s2, 4")
        L(f"s_add_u32 s100, s100, s{sW}")
        L(f"s_lshl_b32 s100, s100, 6")
        L(f"s_add_u32 s100, s100, {base}")
        L("v_mov_b32 v0, 0")
        for i in range(n):
            L(f"v_mov_b32 v1, s{80+2*i}")
            L(f"buffer_store_dword v1, v0, s[{ws_srd}:{ws_srd+3}], s100 offen offset:{4*i}")
        L("s_waitcnt vmcnt(0)")
    def text(self):
        return "\n".join((l if l.endswith(":") or l.startswith(".") else "    " + l) for l in self.lines) + "\n"

def vr(a, n=1): return f"v{a}" if n == 1 else f"v[{a}:{a+n-1}]"
def sr(a, n=1): return f"s{a}" if n == 1 else f"s[{a}:{a+n-1}]"

TRANS = ("v_exp_f32", "v_log_f32", "v_rcp_f32", "v_rsq_f32", "v_sqrt_f32", "v_sin_f32", "v_cos_f32")
def _regs(tok):
    tok = tok.strip().lstrip("-")
    m = re.fullmatch(r"(?:abs\()?\|?([vsa])(\d+)\|?\)?", tok)
    if m: return [(m.group(1), int(m.group(2)))]
    m = re.fullmatch(r"([vsa])\[(\d+):(\d+)\]", tok)
    if m: return [(m.group(1), i) for i in range(int(m.group(2)), int(m.group(3))+1)]
    if tok == "vcc": return [("s", 106), ("s", 107)]
    if tok == "m0": return [("s", 124)]
    if tok == "exec": return [("s", 126), ("s", 127)]
    if tok in ("exec_lo",): return [("s", 126)]
    if tok in ("exec_hi",): return [("s", 127)]
    return []
def parse(line):
    line = line.split(";")[0].strip()
    if not line or line.endswith(":") or line.startswith("."): return None
    parts = line.split(None, 1)
    op = parts[0]; rest = parts[1] if len(parts) > 1 else ""
    ops = []; depth = 0; cur = ""
    for ch in rest:
        if ch == "[": depth += 1
        if ch == "]": depth -= 1
        if ch == "," and depth == 0: ops.append(cur.strip()); cur = ""
        else: cur += ch
    if cur.strip(): ops.append(cur.strip())
    mods = ""
    if ops:
        last = ops[-1].split(None, 1)
        if len(last) > 1: ops[-1] = last[0]; mods = last[1]
    return op, ops, mods
def classify(op, ops, mods):
    R = lambda i: _regs(ops[i]) if i < len(ops) else []
    d = dict(op=op, w=[], r=[], kind="other", passes=0, srcC=[], srcAB=[], dpp=("row_" in mods or "quad_perm" in mods or op.endswith("_dpp")), wide=False, lds=(" lds" in " " + mods))
    if op.startswith("v_mfma"):
        d["kind"] = "mfma"; d["w"] = R(0); d["srcAB"] = R(1) + R(2); d["srcC"] = R(3); d["r"] = d["srcAB"] + d["srcC"]
        d["passes"] = 8 if "32x32" in op else 4
    elif op.startswith("v_cmp"):
        d["kind"] = "valu"; d["w"] = R(0); d["r"] = sum((R(i) for i in range(1, len(ops))), [])
    elif op.startswith("v_readfirstlane") or op.startswith("v_readlane"):
        d["kind"] = "valu"; d["w"] = R(0); d["r"] = sum((R(i) for i in range(1, len(ops))), []); d["rl"] = True
    elif op.startswith("v_permlane"):
        d["kind"] = "valu"; d["w"] = R(0) + R(1); d["r"] = R(0) + R(1); d["perm"] = True
    elif op.startswith("v_"):
        d["kind"] = "valu"; d["w"] = R(0); d["r"] = sum((R(i) for i in range(1, len(ops))), [])
        if op.startswith(("v_fmac", "v_dot2c", "v_pk_fmac")) or "UNUSED_PRESERVE" in mods: d["r"] += R(0)
        if op.startswith(("v_add_co", "v_sub_co", "v_addc_co")): d["w"] += R(1)
        if d["dpp"]: d["r"] += R(0)
        if op.replace("_e32", "").replace("_e64", "") in TRANS: d["trans"] = True
    elif op.startswith(("buffer_load", "global_load")):
        d["kind"] = "vmem"
        if d["lds"]: d["r"] = sum((R(i) for i in range(len(ops))), []) + [("s", 124)]
        else: d["w"] = R(0); d["r"] = sum((R(i) for i in range(1, len(ops))), [])
    elif op.startswith(("buffer_store", "global_store", "buffer_atomic", "global_atomic")):
        d["kind"] = "vmem"; d["r"] = sum((R(i) for i in range(len(ops))), [])
        if op.endswith(("x3", "x4")):
            d["wide"] = True; d["data"] = R(0) if op.startswith("buffer") else R(1)
    elif op.startswith("ds_read") or op.startswith("ds_bperm") or op.startswith("ds_swiz"):
        d["kind"] = "ds"; d["w"] = R(0); d["r"] = sum((R(i) for i in range(1, len(ops))), [])
    elif op.startswith("ds_"):
        d["kind"] = "ds"; d["r"] = sum((R(i) for i in range(len(ops))), [])
    elif op.startswith("s_nop"):
        d["kind"] = "nop"; d["n"] = int(ops[0], 0) + 1
    elif op.startswith("s_"):
        d["kind"] = "salu"
        if op.startswith(("s_cmp", "s_waitcnt", "s_barrier", "s_cbranch", "s_branch", "s_setprio", "s_sleep", "s_endpgm", "s_bitcmp")):
            d["r"] = sum((R(i) for i in range(len(ops))), [])
        else:
            d["w"] = R(0); d["r"] = sum((R(i) for i in range(1, len(ops))), [])
            if "saveexec" in op: d["w"] += [("s", 126), ("s", 127)]
    return d
def check_hazards(lines, verbose=True):
    hist = []
    pos = 0; errs = []
    for ln in lines:
        p = parse(ln)
        if p is None: continue
        d = classify(*p)
        Rr = set(d["r"]); W = set(d["w"])
        for (q, e, t) in reversed(hist):
            dist = pos - q - 1 + 0
            if dist > 20: break
            need = 0
            ew = set(e["w"])
            if e["kind"] == "valu":
                vw = {x for x in ew if x[0] == "v"}; sw = {x for x in ew if x[0] == "s"}
                if d["kind"] == "mfma" and (vw & Rr): need = max(need, 2)
                if d["kind"] == "valu" and d["dpp"] and (vw & Rr): need = max(need, 2)
                if d.get("perm") and (vw & Rr): need = max(need, 2)
                if d.get("rl") and (vw & Rr): need = max(need, 1)
                if e.get("trans") and d["kind"] == "valu" and not d.get("trans") and (vw & Rr): need = max(need, 1)
                if d["kind"] == "valu" and (sw & Rr): need = max(need, 2)
                if d["kind"] == "valu" and d["op"].startswith(("v_cndmask", "v_addc")) and (sw & {("s",106),("s",107)}) and "vcc" in ln: need = max(need, 2)
                if d["kind"] == "vmem" and (sw & Rr): need = max(need, 5)
                if d["kind"] == "salu" and (sw & Rr): need = max(need, 1)
            if e["kind"] == "mfma":
                big = e["passes"] == 8
                if d["kind"] == "mfma":
                    if ew & set(d["srcAB"]): need = max(need, 12 if big else 8)
                    c = set(d["srcC"])
                    if (ew & c) and not (ew == c and e["passes"] == d["passes"]): need = max(need, 10 if big else 6)
                    if (ew & W) and not (ew == c and W == c) and not (ew & c): need = max(need, 0)
                elif d["kind"] in ("valu", "vmem", "ds"):
                    if ew & (Rr | W): need = max(need, 12 if big else 8)
                    if d["kind"] == "valu" and (set(e["srcC"]) & W): need = max(need, 7 if big else 3)
            if e["kind"] == "salu" and ("s", 124) in ew and d["kind"] == "vmem" and d["lds"]: need = max(need, 1)
            if e.get("wide") and d["kind"] == "valu" and (set(e["data"]) & W): need = max(need, 2)
            if e.get("wide") and d["kind"] in ("ds", "vmem") and (set(e["data"]) & W): need = max(need, 1)
            if need > dist:
                errs.append(f"hazard: need {need} have {dist}: [{t}] -> [{ln.strip()}]")
        hist.append((pos, d, ln.strip()))
        pos += d["n"] if d["kind"] == "nop" else 1
        if len(hist) > 40: hist.pop(0)
    if verbose:
        for e in errs[:50]: print(e)
    return errs
```

```python
import sys
from asmlib import *
from layout import *
HDR = open("parallel_sum__mha_block__mixer_token_mlp__prompt.s.ref").read().split("; Override")[0]
def assemble(kernels, path, single=False):
    s = HDR
    for n, a, m in kernels:
        kk = "" if single else f"kernel={n} "
        s += f"; @launch {kk}grid=({m['grid']},1,1) block=({m['block']},1,1) lds={m['lds']}\n"
    s += '.amdgcn_target "amdgcn-amd-amdhsa--gfx950"\n.text\n'
    seen = set()
    for n, a, m in kernels:
        if n in seen: continue
        seen.add(n)
        errs = check_hazards(a.lines)
        if errs: print(f"!! {len(errs)} hazards in {n}")
        s += f".globl {n}\n.p2align 8\n.type {n},@function\n" + a.text()
    s += '.section .rodata,"a"\n'
    seen = set()
    for n, a, m in kernels:
        if n in seen: continue
        seen.add(n)
        v = m['vgpr']
        s += f""".p2align 6
.amdhsa_kernel {n}
  .amdhsa_next_free_vgpr {v}
  .amdhsa_next_free_sgpr {m['sgpr']}
  .amdhsa_accum_offset {(v+3)//4*4}
  .amdhsa_group_segment_fixed_size 0
  .amdhsa_kernarg_size 88
  .amdhsa_user_sgpr_count 2
  .amdhsa_user_sgpr_kernarg_segment_ptr 1
  .amdhsa_system_sgpr_workgroup_id_x 1
  .amdhsa_float_denorm_mode_32 3
.end_amdhsa_kernel
"""
    open(path, "w").write(s)
if __name__ == "__main__":
    import k1
    a, m = k1.gen_k1("qkv_kernel", rot=False)
    assemble([("qkv_kernel", a, m)], "t_k1.s")
    a, m = k1.gen_k1("qkv_kernel", diag=True, rot=False)
    assemble([("qkv_kernel", a, m)], "t_k1d.s")
    e = Asm(); e.label("empty_kernel"); e("s_endpgm")
    assemble([("empty_kernel", e, dict(vgpr=32, sgpr=16, lds=0, grid=256, block=256))], "t_empty.s")
```

```python
from asmlib import *
from layout import *

def srd(a, d, base, size):
    a(f"s_mov_b32 s{d}, s{base}")
    a(f"s_and_b32 s{d+1}, s{base+1}, 0xffff")
    a(f"s_mov_b32 s{d+2}, {size}")
    a(f"s_mov_b32 s{d+3}, 0x20000")

def allreduce32(a, v, t):
    for ror in (8, 4, 2, 1):
        a.nop(2)
        a(f"v_add_f32_dpp v{v}, v{v}, v{v} row_ror:{ror} row_mask:0xf bank_mask:0xf")
    a(f"v_mov_b32 v{t}, v{v}")
    a.nop(2)
    a(f"v_permlane16_swap_b32 v{v}, v{t}")
    a(f"v_add_f32 v{v}, v{v}, v{t}")

def bf16r(a, v):
    a(f"v_cvt_pk_bf16_f32 v{v}, v{v}, v{v}")
    a(f"v_and_b32 v{v}, 0xffff0000, v{v}")

LDS_X = 65536
LDS_MISC = 131072
LDS_CS = LDS_MISC + 10240
LDS_ST = LDS_CS + 512
K1_LDS = LDS_ST + 1024


def gen_k1(name, diag=False, rot=True, xstats=False):
    a = Asm(); a.diag = diag
    sW, sMT, sNT = 3, 10, 11
    X, Wd, WS = 12, 16, 20
    sXo, sWo, sMX, sMW = 24, 25, 26, 27
    sT0, sT1, sT2, sT3 = 28, 29, 30, 31
    sCol, sKS, sCnt, sWV = 32, 35, 36, 37
    vL = 1
    vXA = 2
    vWA = 6
    vXR = 10
    vWR = 14
    vWO = 18
    vSEL = 20
    vCS = 24
    vRS = 28
    vSQ = 32
    vF = 48
    vACC = 96
    vT = 160
    t0, t1, t2, t3 = vT+20, vT+21, vT+22, vT+23
    vI, vH = vT+24, vT+25
    s0, s1, s2_ = vT+50, vT+51, vT+52
    a.label(name)
    a(f"s_cmp_ge_u32 s2, 256")
    a(f"s_cbranch_scc1 {name}_end")
    a.stamp(0); a.stamp(8, True)
    a("s_load_dwordx4 s[4:7], s[0:1], 0")
    a("s_load_dwordx2 s[8:9], s[0:1], 80")
    a("v_lshrrev_b32 v2, 6, v0")
    a(f"v_and_b32 v{vL}, 63, v0")
    a(f"v_readfirstlane_b32 s{sWV}, v2")
    a(f"s_and_b32 s{sT0}, s2, 7")
    a(f"s_lshr_b32 s{sT1}, s2, 3")
    a(f"s_and_b32 s{sW}, s{sWV}, 3")
    a(f"s_and_b32 s{sT2}, s{sT0}, 3")
    a(f"s_lshl_b32 s{sT2}, s{sT2}, 2")
    a(f"s_and_b32 s{sT3}, s{sT1}, 3")
    a(f"s_add_u32 s{sMT}, s{sT2}, s{sT3}")
    a(f"s_lshr_b32 s{sT0}, s{sT0}, 2")
    a(f"s_lshl_b32 s{sT0}, s{sT0}, 3")
    a(f"s_lshr_b32 s{sT1}, s{sT1}, 2")
    a(f"s_add_u32 s{sNT}, s{sT0}, s{sT1}")
    a(f"s_lshl_b32 s{sMX}, s{sW}, 14")
    a(f"s_add_u32 s{sMX}, s{sMX}, {LDS_X}")
    a(f"v_and_b32 v{vI}, 31, v{vL}")
    a(f"v_lshrrev_b32 v{vH}, 5, v{vL}")
    a(f"s_cmp_lt_u32 s{sWV}, 4")
    a(f"s_cbranch_scc1 {name}_C")
    if rot:
        a(f"s_mul_i32 s{sKS}, s{sT3}, 3")
        a(f"s_add_u32 s{sKS}, s{sKS}, s{sT1}")
        a(f"s_sub_u32 s{sT2}, s{sKS}, 10")
        a(f"s_cmp_ge_u32 s{sKS}, 10")
        a(f"s_cselect_b32 s{sKS}, s{sT2}, s{sKS}")
    else:
        a(f"s_mov_b32 s{sKS}, 0")
    a(f"s_mul_i32 s{sT0}, s{sNT}, 240")
    a(f"s_lshl_b32 s{sT1}, s{sNT}, 8")
    a(f"s_add_u32 s{sT1}, s{sT1}, {2560 - 11*256}")
    a(f"s_cmp_lt_u32 s{sNT}, 11")
    a(f"s_cselect_b32 s{sCol}, s{sT0}, s{sT1}")
    a(f"v_mul_u32_u24 v{vT+1}, 1280, v{vH}")
    a(f"v_lshl_add_u32 v{vT}, v{vI}, 3, v{vT+1}")
    sSide = 38
    a(f"s_lshl_b32 s{sT0}, s{sMT}, 7")
    a(f"s_lshl_b32 s{sT1}, s{sNT}, 3")
    a(f"s_add_u32 s{sT1}, s{sT1}, s{sT0}")
    a(f"s_lshl_b32 s{sT2}, s{sW}, 1")
    a(f"s_add_u32 s{sT1}, s{sT1}, s{sT2}")
    a(f"s_mul_i32 s{sSide}, s{sT1}, 1280")
    a(f"s_lshl_b32 s{sT2}, s{sW}, 5")
    a(f"s_add_u32 s{sT0}, s{sT0}, s{sT2}")
    a(f"s_mul_i32 s{sXo}, s{sT0}, 1280")
    a(f"s_lshl_b32 s{sT2}, s{sKS}, 7")
    a(f"s_add_u32 s{sXo}, s{sXo}, s{sT2}")
    a(f"s_mul_i32 s{sWo}, s{sW}, {16*3840}")
    a(f"s_add_u32 s{sWo}, s{sWo}, s{sCol}")
    a(f"s_mul_i32 s{sT2}, s{sKS}, {64*3840}")
    a(f"s_add_u32 s{sWo}, s{sWo}, s{sT2}")
    a(f"s_lshl_b32 s{sMW}, s{sW}, 12")
    a(f"v_lshrrev_b32 v{t0}, 3, v{vL}")
    a(f"v_lshrrev_b32 v{t1}, 4, v{vL}")
    a(f"v_and_b32 v{t2}, 7, v{vL}")
    a(f"v_mul_u32_u24 v{t0}, 1280, v{t0}")
    for j in range(4):
        a(f"v_xor_b32 v{t3}, v{t2}, v{t1}")
        if j % 2: a(f"v_xor_b32 v{t3}, 4, v{t3}")
        a(f"v_lshl_add_u32 v{vXA+j}, v{t3}, 4, v{t0}")
        if j: a(f"v_add_u32 v{vXA+j}, {8*j*1280}, v{vXA+j}")
    a(f"v_and_b32 v{t2}, 15, v{vL}")
    a(f"v_lshlrev_b32 v{t3}, 2, v{t1}")
    a(f"v_xor_b32 v{t2}, v{t2}, v{t3}")
    a(f"v_mul_u32_u24 v{t0}, 3840, v{t1}")
    a(f"v_lshl_add_u32 v{vWA}, v{t2}, 4, v{t0}")
    for j in range(1, 4):
        a(f"v_add_u32 v{vWA+j}, {4*j*3840}, v{vWA}")
    a("s_waitcnt lgkmcnt(0)")
    a.stamp(1)
    srd(a, X, 4, 2048*640*2)
    srd(a, Wd, 6, 640*1920*2)
    srd(a, WS, 8, WS_SIZE)
    vS = vT + 4
    def dma(stage):
        buf = stage % 4
        for j in range(4):
            a(f"s_add_u32 m0, s{sMW}, {buf*16384 + j*1024}\ns_nop 0\nbuffer_load_dwordx4 v{vWA+j}, {sr(Wd,4)}, s{sWo} offen lds")
            a(f"s_add_u32 m0, s{sMX}, {buf*4096 + j*1024}\ns_nop 0\nbuffer_load_dwordx4 v{vXA+j}, {sr(X,4)}, s{sXo} offen lds")
        a(f"s_add_u32 s{sXo}, s{sXo}, 128\ns_add_u32 s{sWo}, s{sWo}, {64*3840}")
        if rot:
            a(f"s_add_u32 s{sKS}, s{sKS}, 1")
            a(f"s_cmp_eq_u32 s{sKS}, 10")
            a(f"s_cselect_b32 s{sT0}, 1280, 0")
            a(f"s_cselect_b32 s{sT1}, {640*3840}, 0")
            a(f"s_sub_u32 s{sXo}, s{sXo}, s{sT0}")
            a(f"s_sub_u32 s{sWo}, s{sWo}, s{sT1}")
    dma(0)
    for i in range(5):
        a(f"buffer_load_dwordx2 {vr(vS+2*i,2)}, v{vT}, {sr(X,4)}, s{sSide} offen offset:{256*i}")
    dma(1)
    a.stamp(2)
    E = vT + 30
    def ln_a():
        a(f"v_add_f32 v{s0}, v{E}, v{E+1}")
        a(f"v_add_f32 v{s1}, v{E+2}, v{E+3}")
        for i in range(4, 20, 2):
            a(f"v_add_f32 v{s0}, v{s0}, v{E+i}")
            a(f"v_add_f32 v{s1}, v{s1}, v{E+i+1}")
        a(f"v_add_f32 v{s0}, v{s0}, v{s1}")
        allreduce32(a, s0, s1)
        a(f"v_mul_f32 v{s0}, {hexf(1/640)}, v{s0}")
        a(f"v_sub_f32 v{s2_}, v{E}, v{s0}")
        a(f"v_mul_f32 v{s1}, v{s2_}, v{s2_}")
        for i in range(1, 20):
            a(f"v_sub_f32 v{s2_}, v{E+i}, v{s0}")
            a(f"v_fmac_f32 v{s1}, v{s2_}, v{s2_}")
        allreduce32(a, s1, s2_)
        a(f"v_mul_f32 v{s1}, {hexf(1/640)}, v{s1}")
        bf16r(a, s0); bf16r(a, s1)
        a(f"v_add_f32 v{s1}, {hexf(1e-5)}, v{s1}")
        bf16r(a, s1)
        a(f"v_sqrt_f32 v{s1}, v{s1}")
        a.nop(1)
        bf16r(a, s1)
        a(f"v_rcp_f32 v{s1}, v{s1}")
        a.nop(1)
    def ln_b():
        a(f"v_mul_f32 v{s0}, v{s0}, v{s1}")
        for i in range(20):
            a(f"v_fma_f32 v{E+i}, v{E+i}, v{s1}, -v{s0}")
    def piece0():
        for i in range(10):
            a(f"v_lshlrev_b32 v{E+2*i}, 16, v{vS+i}")
            a(f"v_and_b32 v{E+2*i+1}, 0xffff0000, v{vS+i}")
        ln_a()
    def piece1():
        ln_b(); ln_a()
    def piece2():
        ln_b()
        for i in range(10):
            a(f"v_cvt_pk_bf16_f32 v{vS+i}, v{E+2*i}, v{E+2*i+1}")
        a(f"s_mul_i32 s{sT0}, s{sW}, 2560")
        a(f"s_add_u32 s{sT0}, s{sT0}, {LDS_MISC}")
        a(f"v_add_u32 v{t0}, s{sT0}, v{vT}")
        for i in range(5):
            a(f"ds_write_b64 v{t0}, {vr(vS+2*i,2)} offset:{256*i}")
        a(f"v_bfe_u32 v{t0}, v{vL}, 2, 2")
        a(f"v_mul_u32_u24 v{t0}, 1280, v{t0}")
        a(f"v_lshrrev_b32 v{t1}, 4, v{vL}")
        a(f"v_lshl_add_u32 v{t0}, v{t1}, 5, v{t0}")
        a(f"v_and_b32 v{t1}, 3, v{vL}")
        a(f"v_lshl_add_u32 v{t0}, v{t1}, 3, v{t0}")
        a(f"s_lshl_b32 s{sT0}, s{sW}, 7")
        a(f"s_add_u32 s{sT0}, s{sT0}, {LDS_MISC}")
        a(f"v_add_u32 v{t0}, s{sT0}, v{t0}")
        a(f"s_cmp_lt_u32 s{sW}, 2")
        a(f"s_cselect_b32 s{sT3}, 8, 4")
        a(f"s_lshl_b32 s{sT0}, s{sT3}, 7")
        a(f"v_add_u32 v{t1}, s{sT0}, v{t0}")
        a(f"v_lshlrev_b32 v{t2}, 17, v{vH}")
        a(f"v_lshl_add_u32 v{t2}, v{vI}, 4, v{t2}")
        a("s_waitcnt lgkmcnt(0)")
    def piece3():
        a(f"ds_read_b64_tr_b16 {vr(E,2)}, v{t0}")
        a(f"ds_read_b64_tr_b16 {vr(E+2,2)}, v{t0} offset:5120")
        a(f"ds_read_b64_tr_b16 {vr(E+4,2)}, v{t0} offset:512")
        a(f"ds_read_b64_tr_b16 {vr(E+6,2)}, v{t0} offset:{512+5120}")
        a(f"ds_read_b64_tr_b16 {vr(E+8,2)}, v{t1}")
        a(f"ds_read_b64_tr_b16 {vr(E+10,2)}, v{t1} offset:5120")
        a(f"s_lshl_b32 s{sT0}, s{sMT}, 4")
        a(f"s_add_u32 s{sT0}, s{sT0}, s{sNT}")
        a(f"s_lshl_b32 s{sT0}, s{sT0}, 9")
        a(f"s_lshl_b32 s{sT1}, s{sW}, 18")
        a(f"s_add_u32 s{sT0}, s{sT0}, s{sT1}")
        a(f"s_add_u32 s{sT0}, s{sT0}, {WS_HT}")
        a(f"s_add_u32 s{sT1}, s{sT0}, {4<<18}")
        a(f"s_lshl_b32 s{sT2}, s{sT3}, 18")
        a(f"s_add_u32 s{sT2}, s{sT2}, s{sT0}")
        a("s_waitcnt lgkmcnt(0)")
        a(f"buffer_store_dwordx4 {vr(E,4)}, v{t2}, {sr(WS,4)}, s{sT0} offen")
        a(f"buffer_store_dwordx4 {vr(E+4,4)}, v{t2}, {sr(WS,4)}, s{sT1} offen")
        a(f"buffer_store_dwordx4 {vr(E+8,4)}, v{t2}, {sr(WS,4)}, s{sT2} offen")
    a("s_waitcnt vmcnt(13)")
    a("s_barrier")
    a.stamp(3)
    dma(2); dma(3)
    a("s_waitcnt vmcnt(16)")
    a("s_barrier")
    dma(4)
    piece0()
    a("s_waitcnt vmcnt(16)")
    a("s_barrier")
    dma(5)
    piece1()
    a("s_waitcnt vmcnt(16)")
    a("s_barrier")
    dma(6)
    piece2()
    a("s_waitcnt vmcnt(16)")
    a("s_barrier")
    a.stamp(4)
    dma(7)
    piece3()
    a("s_waitcnt vmcnt(19)")
    a("s_barrier")
    dma(8)
    a("s_waitcnt vmcnt(19)")
    a("s_barrier")
    dma(9)
    a("s_waitcnt vmcnt(16)")
    a("s_barrier")
    a("s_waitcnt vmcnt(8)")
    a("s_barrier")
    a("s_waitcnt vmcnt(0)")
    a.stamp(5)
    a("s_barrier")
    a.stamp(6); a.stamp(7); a.stamp(9, True)
    a.dump_stamps(10, WS, sWV, WS_DIAG)
    a("s_endpgm")
    a.label(f"{name}_C")
    a(f"v_bfe_u32 v{t0}, v{vL}, 1, 3")
    a(f"v_xor_b32 v{t0}, v{t0}, v{vH}")
    a(f"v_lshlrev_b32 v{t1}, 7, v{vI}")
    a(f"v_add_u32 v{t1}, s{sMX}, v{t1}")
    for t in range(4):
        a(f"v_xor_b32 v{t2}, {2*t}, v{t0}")
        a(f"v_lshl_add_u32 v{vXR+t}, v{t2}, 4, v{t1}")
    a(f"v_bfe_u32 v{t0}, v{vL}, 2, 2")
    a(f"v_lshl_add_u32 v{t1}, v{vH}, 3, v{t0}")
    a(f"v_lshlrev_b32 v{t1}, 8, v{t1}")
    a(f"v_bfe_u32 v{t2}, v{vL}, 4, 1")
    a(f"v_lshl_add_u32 v{t1}, v{t2}, 5, v{t1}")
    a(f"v_and_b32 v{t2}, 3, v{vL}")
    a(f"v_lshl_add_u32 v{t1}, v{t2}, 3, v{t1}")
    for b in range(4):
        a(f"v_xor_b32 v{t2}, {b}, v{t0}")
        a(f"v_lshl_add_u32 v{vWR+b}, v{t2}, 6, v{t1}")
    a(f"v_xor_b32 v{t2}, s{sW}, v{t0}")
    a(f"v_lshl_add_u32 v{vWO}, v{t2}, 6, v{t1}")
    a(f"v_and_b32 v{t0}, 7, v{vL}")
    a(f"v_bfe_u32 v{t1}, v{vL}, 4, 1")
    a(f"v_cmp_eq_u32 vcc, v{t0}, v{t1}")
    a(f"v_mov_b32 v{t2}, 0x3f803f80")
    a.nop(1)
    a(f"v_cndmask_b32 v{vSEL}, 0, v{t2}, vcc")
    for i in range(1, 4): a(f"v_mov_b32 v{vSEL+i}, v{vSEL}")
    for i in range(vCS, vCS+24): a(f"v_mov_b32 v{i}, 0")
    for i in range(vACC, vACC+64): a(f"v_mov_b32 v{i}, 0")
    a("s_waitcnt lgkmcnt(0)")
    a.stamp(1)
    srd(a, WS, 8, WS_SIZE)
    a(f"s_mov_b32 s{sT3}, 0x3000")
    a(f"s_cmp_ge_u32 s{sNT}, 11")
    a(f"s_cbranch_scc1 {name}_V")

    def reads(t, fs):
        F = vF + 24*fs
        L = [f"ds_read_b128 {vr(F,4)}, v{vXR+t}"]
        for b in range(4):
            for h in range(2):
                L.append(f"ds_read_b64_tr_b16 {vr(F+4+4*b+2*h,2)}, v{vWR+b} offset:{t*4096+h*1024}")
        for h in range(2):
            L.append(f"ds_read_b64_tr_b16 {vr(F+20+2*h,2)}, v{vWO} offset:{t*4096+h*1024}")
        return L
    def advance():
        L = []
        for t in range(4):
            L.append(f"v_add_u32 v{t0}, 0x1000, v{vXR+t}\nv_bfi_b32 v{vXR+t}, s{sT3}, v{t0}, v{vXR+t}")
        for r in list(range(vWR, vWR+4)) + [vWO]:
            L.append(f"v_add_u32 v{r}, 0x4000, v{r}\nv_and_b32 v{r}, 0xffff, v{r}")
        return L
    def mfmas(fs, isV):
        F = vF + 24*fs
        L = []
        for b in range(4):
            A, B = (vr(F,4), vr(F+4+4*b,4)) if isV else (vr(F+4+4*b,4), vr(F,4))
            L.append(f"v_mfma_f32_32x32x16_bf16 {vr(vACC+16*b,16)}, {A}, {B}, {vr(vACC+16*b,16)}")
        L.append(f"v_mfma_f32_32x32x16_bf16 {vr(vSQ,16)}, {vr(F,4)}, {vr(F,4)}, {vr(vSQ,16)}")
        L.append(f"v_mfma_f32_16x16x32_bf16 {vr(vRS,4)}, {vr(vSEL,4)}, {vr(F,4)}, {vr(vRS,4)}")
        L.append(f"v_mfma_f32_16x16x32_bf16 {vr(vCS,4)}, {vr(vSEL,4)}, {vr(F+20,4)}, {vr(vCS,4)}")
        return L
    def interleave(ms, others, per):
        idx = 0
        for i, m in enumerate(ms):
            a(m)
            for _ in range(per):
                if idx < len(others): a(others[idx]); idx += 1
        assert idx == len(others)
    def mainloop(isV):
        lab = f"{name}_L{'V' if isV else 'Q'}"
        a.stamp(2)
        a("s_barrier")
        a.stamp(3)
        for x in reads(0, 0): a(x)
        a(f"s_mov_b32 s{sCnt}, 9")
        a(".p2align 3")
        a.label(lab)
        for t in range(4):
            fs = t % 2
            a("s_waitcnt lgkmcnt(0)")
            if t < 3:
                oth = reads(t+1, 1-fs)
                if t == 2: oth = oth + advance()
                interleave(mfmas(fs, isV), oth, 3)
            else:
                a(f"s_cmp_eq_u32 s{sCnt}, 0")
                a(f"s_cbranch_scc1 {lab}_x")
                a("s_barrier")
                a(f"s_sub_u32 s{sCnt}, s{sCnt}, 1")
                interleave(mfmas(fs, isV), reads(0, 1-fs), 3)
                a(f"s_branch {lab}")
        a.label(f"{lab}_x")
        for m in mfmas(1, isV): a(m)
        a.stamp(4)
    def stats():
        a(f"s_lshl_b32 s{sT0}, s{sW}, 7")
        a(f"s_add_u32 s{sT0}, s{sT0}, {LDS_CS}")
        a(f"v_lshl_add_u32 v{t0}, v{vL}, 2, s{sT0}")
        a(f"v_and_b32 v{t1}, 3, v{vL}")
        a(f"v_bfe_u32 v{t2}, v{vL}, 3, 2")
        a(f"v_lshl_add_u32 v{t1}, v{t2}, 2, v{t1}")
        a(f"v_bfe_u32 v{t2}, v{vL}, 2, 1")
        a(f"v_xor_b32 v{t2}, v{t2}, v{vH}")
        a(f"v_lshl_add_u32 v{t1}, v{t2}, 6, v{t1}")
        for r in range(16):
            a(f"v_cmp_eq_u32 {sr(40+2*r,2)}, {r}, v{t1}")
        a(f"v_mov_b32 v{s0}, 0")
        a("s_mov_b64 exec, 0xffff")
        a(f"ds_write2_b32 v{t0}, v{vCS}, v{vCS+1} offset0:0 offset1:16")
        a("s_mov_b64 exec, -1")
        for r in range(16):
            a(f"v_cndmask_b32 v{s0}, v{s0}, v{vSQ+r}, {sr(40+2*r,2)}")
        a(f"v_mov_b32 v{s1}, v{s0}")
        a.nop(2)
        a(f"v_permlane32_swap_b32 v{s0}, v{s1}")
        a(f"v_permlane16_swap_b32 v{vRS}, v{vRS+1}")
        a(f"v_add_f32 v{s1}, v{s0}, v{s1}")
        a(f"v_mul_f32 v{s0}, {hexf(1/640)}, v{vRS}")
        a(f"v_mul_f32 v{s2_}, v{s0}, v{s0}")
        a(f"v_fma_f32 v{s1}, v{s1}, s{sT2}, -v{s2_}")
        a(f"v_max_f32 v{s1}, 0, v{s1}")
        bf16r(a, s0); bf16r(a, s1)
        a(f"v_add_f32 v{s1}, {hexf(1e-5)}, v{s1}")
        bf16r(a, s1)
        a(f"v_sqrt_f32 v{s1}, v{s1}")
        a.nop(1)
        bf16r(a, s1)
        a(f"v_rcp_f32 v{s1}, v{s1}")
        return s0, s1
    mainloop(False)
    a(f"s_mov_b32 s{sT2}, {hexf(1/640)}")
    m, r = stats()
    C = vF
    def csreg(rho): return (vF + 4*rho) if rho < 12 else (vSQ + 4*(rho-12))
    a(f"v_lshlrev_b32 v{t0}, 4, v{vH}")
    a(f"v_add_u32 v{t0}, {LDS_CS}, v{t0}")
    a("s_waitcnt lgkmcnt(0)")
    a("s_barrier")
    a.stamp(5)
    for rho in range(15):
        a(f"ds_read_b128 {vr(csreg(rho),4)}, v{t0} offset:{rho*32}")
    vA16, vBq, vBk, vNq, vNk = vT, vT+1, vT+2, vT+3, vT+4
    a(f"v_lshlrev_b32 v{vA16}, 4, v{vL}")
    a(f"v_lshlrev_b32 v{t1}, 3, v{vI}")
    a(f"v_lshl_add_u32 v{vBq}, v{vH}, 14, v{t1}")
    a(f"v_mul_u32_u24 v{t2}, {64*KVT}, v{vH}")
    a(f"v_add_u32 v{vBk}, v{t2}, v{t1}")
    a(f"v_lshlrev_b32 v{t1}, 2, v{vI}")
    a(f"v_lshl_add_u32 v{vNq}, v{vH}, 13, v{t1}")
    a(f"v_lshlrev_b32 v{vNk}, 8, v{vH}")
    sG, sQT = 33, 34
    a(f"s_mul_i32 s{sG}, s{sNT}, 6")
    a(f"s_lshl_b32 s{sQT}, s{sMT}, 2")
    a(f"s_add_u32 s{sQT}, s{sQT}, s{sW}")
    rq = vT + 5
    a(f"v_mul_f32 v{rq}, {hexf(QSCALE)}, v{r}")
    a("s_waitcnt lgkmcnt(0)")
    mm = vT + 6
    a(f"v_mov_b32 v{mm}, v{m}")
    a(f"v_mov_b32 v{mm+1}, v{m}")
    for rho in range(15):
        for hh in range(2):
            A = vACC + 4*rho + 2*hh
            a(f"v_pk_fma_f32 {vr(A,2)}, {vr(mm,2)}, {vr(csreg(rho)+2*hh,2)}, {vr(A,2)} neg_lo:[1,0,0] neg_hi:[1,0,0]")
    rr = vT + 8
    P = vT + 12
    n0, n1, n2 = vT+24+2, vT+24+4, vT+24+6
    for p in range(3):
        r0 = 5*p
        end = f"{name}_p{p}e"
        a(f"s_add_u32 s{sT0}, s{sG}, {2*p}")
        if p == 2:
            a(f"s_cmp_ge_u32 s{sT0}, 64")
            a(f"s_cbranch_scc1 {end}")
        def ss(dst, rhos):
            first = True
            for rho in rhos:
                for hh in range(2):
                    A = vACC + 4*rho + 2*hh
                    if first: a(f"v_pk_mul_f32 {vr(dst,2)}, {vr(A,2)}, {vr(A,2)}"); first = False
                    else: a(f"v_pk_fma_f32 {vr(dst,2)}, {vr(A,2)}, {vr(A,2)}, {vr(dst,2)}")
        ss(n0, (r0, r0+1)); ss(n1, (r0+3, r0+4)); ss(n2, (r0+2,))
        a(f"v_add_f32 v{n0}, v{n0}, v{n0+1}")
        a(f"v_add_f32 v{n1}, v{n1}, v{n1+1}")
        a(f"v_add_f32 v{n2}, v{n2}, v{n2+1}")
        a(f"s_cmp_lt_u32 s{sT0}, 32")
        a(f"s_cselect_b64 vcc, -1, 0")
        a(f"v_permlane32_swap_b32 v{n0}, v{n1}")
        a(f"v_cndmask_b32 v{rr}, v{r}, v{rq}, vcc")
        a(f"v_cndmask_b32 v{rr+1}, v{r}, v{rq}, vcc")
        a(f"v_add_f32 v{n0}, v{n0}, v{n1}")
        a(f"v_add_f32 v{n0}, v{n0}, v{n2}")
        a(f"v_sqrt_f32 v{n0}, v{n0}")
        for k in range(10):
            A = vACC + 4*r0 + 2*k
            a(f"v_pk_mul_f32 {vr(A,2)}, {vr(A,2)}, {vr(rr,2)}")
        a(f"v_mul_f32 v{n0}, v{n0}, v{rr}")
        for k in range(4): a(f"v_cvt_pk_bf16_f32 v{P+k}, v{vACC+4*r0+2*k}, v{vACC+4*r0+2*k+1}")
        for k in range(4): a(f"v_cvt_pk_bf16_f32 v{P+4+k}, v{vACC+4*(r0+3)+2*k}, v{vACC+4*(r0+3)+2*k+1}")
        for k in range(2): a(f"v_cvt_pk_bf16_f32 v{P+8+k}, v{vACC+4*(r0+2)+2*k}, v{vACC+4*(r0+2)+2*k+1}")
        a(f"s_cbranch_scc0 {name}_p{p}k")
        a(f"s_lshl_b32 s{sT1}, s{sT0}, 6")
        a(f"s_add_u32 s{sT1}, s{sT1}, s{sQT}")
        a(f"s_lshl_b32 s{sT2}, s{sT1}, 10")
        a(f"s_add_u32 s{sT2}, s{sT2}, {WS_QA}")
        a(f"s_add_u32 s{sT3}, s{sT2}, 65536")
        a(f"buffer_store_dwordx4 {vr(P,4)}, v{vA16}, {sr(WS,4)}, s{sT2} offen")
        a(f"buffer_store_dwordx4 {vr(P+4,4)}, v{vA16}, {sr(WS,4)}, s{sT3} offen")
        a(f"s_lshl_b32 s{sT2}, s{sT1}, 8")
        a(f"s_add_u32 s{sT2}, s{sT2}, {WS_QB}")
        a(f"s_lshl_b32 s{sT3}, s{sT1}, 7")
        a(f"s_add_u32 s{sT3}, s{sT3}, {WS_QN}")
        a(f"buffer_store_dwordx2 {vr(P+8,2)}, v{vBq}, {sr(WS,4)}, s{sT2} offen")
        a(f"buffer_store_dword v{n0}, v{vNq}, {sr(WS,4)}, s{sT3} offen")
        a(f"s_branch {end}")
        a.label(f"{name}_p{p}k")
        a(f"s_sub_u32 s{sT1}, s{sT0}, 32")
        a(f"s_lshl_b32 s{sT1}, s{sT1}, 6")
        a(f"s_add_u32 s{sT1}, s{sT1}, s{sQT}")
        a(f"s_mul_i32 s{sT2}, s{sT1}, {KVT}")
        a(f"s_add_u32 s{sT2}, s{sT2}, {WS_KV}")
        a(f"s_add_u32 s{sT3}, s{sT2}, {64*KVT}")
        a(f"buffer_store_dwordx4 {vr(P,4)}, v{vA16}, {sr(WS,4)}, s{sT2} offen")
        a(f"buffer_store_dwordx4 {vr(P+4,4)}, v{vA16}, {sr(WS,4)}, s{sT3} offen")
        a(f"buffer_store_dwordx2 {vr(P+8,2)}, v{vBk}, {sr(WS,4)}, s{sT2} offen offset:1024")
        for ror in (8, 4, 2, 1):
            a.nop(2)
            a(f"v_max_f32_dpp v{n0}, v{n0}, v{n0} row_ror:{ror} row_mask:0xf bank_mask:0xf")
        a(f"v_mov_b32 v{n1}, v{n0}")
        a(f"s_lshl_b32 s{sT3}, s{sT1}, 2")
        a(f"s_add_u32 s{sT3}, s{sT3}, {WS_KMAX}")
        a(f"v_permlane16_swap_b32 v{n0}, v{n1}")
        a(f"v_max_f32 v{n0}, v{n0}, v{n1}")
        a("s_mov_b32 exec_lo, 1")
        a("s_mov_b32 exec_hi, 1")
        a(f"buffer_store_dword v{n0}, v{vNk}, {sr(WS,4)}, s{sT3} offen")
        a("s_mov_b64 exec, -1")
        a.label(end)
    a.stamp(6)
    if diag: a("s_waitcnt vmcnt(0)")
    a.stamp(7); a.stamp(9, True)
    a.dump_stamps(10, WS, sWV, WS_DIAG)
    a("s_endpgm")
    a.label(f"{name}_V")
    mainloop(True)
    a(f"s_mov_b32 s{sT2}, {hexf(1/640)}")
    m, r = stats()
    a(f"s_lshl_b32 s{sT0}, s{sW}, 8")
    a(f"s_add_u32 s{sT0}, s{sT0}, {LDS_ST}")
    a(f"v_lshl_add_u32 v{t0}, v{vI}, 2, s{sT0}")
    a(f"ds_write2_b32 v{t0}, v{m}, v{r} offset0:0 offset1:32")
    a(f"v_lshl_add_u32 v{t1}, v{vH}, 4, s{sT0}")
    a(f"v_lshlrev_b32 v{t2}, 2, v{vI}")
    a(f"v_add_u32 v{t2}, {LDS_CS}, v{t2}")
    a("s_waitcnt lgkmcnt(0)")
    a("s_barrier")
    a.stamp(5)
    M, R, CSv = vF, vF+16, vF+32
    for i in range(4):
        a(f"ds_read_b128 {vr(M+4*i,4)}, v{t1} offset:{32*i}")
        a(f"ds_read_b128 {vr(R+4*i,4)}, v{t1} offset:{128+32*i}")
    for b in range(4):
        a(f"ds_read_b32 v{CSv+2*b}, v{t2} offset:{128*b}")
    vV = vT
    a(f"s_sub_u32 s{sT0}, s{sNT}, 11")
    a(f"s_lshl_b32 s{sT0}, s{sT0}, 7")
    a(f"s_mov_b32 s{sT1}, {64*KVT}")
    a(f"v_mul_u32_u24 v{t3}, 320, v{vH}")
    for b in range(4):
        a(f"v_add_u32 v{t0}, s{sT0}, v{vI}")
        if b: a(f"v_add_u32 v{t0}, {32*b}, v{t0}")
        a(f"v_mul_u32_u24 v{t1}, 3277, v{t0}")
        a(f"v_lshrrev_b32 v{t1}, 16, v{t1}")
        a(f"v_mul_u32_u24 v{t2}, 20, v{t1}")
        a(f"v_sub_u32 v{t0}, v{t0}, v{t2}")
        a(f"v_mul_lo_u32 v{t1}, v{t1}, s{sT1}")
        a(f"v_lshl_add_u32 v{t0}, v{t0}, 4, v{t3}")
        a(f"v_add_u32 v{vV+b}, v{t0}, v{t1}")
    a(f"s_lshl_b32 s{sT0}, s{sMT}, 2")
    a(f"s_add_u32 s{sT0}, s{sT0}, s{sW}")
    a(f"s_mul_i32 s{sT0}, s{sT0}, {KVT}")
    a(f"s_add_u32 s{sT0}, s{sT0}, {WS_KV+1280}")
    a("s_waitcnt lgkmcnt(0)")
    P = vT + 8
    for b in range(4):
        a(f"v_mov_b32 v{CSv+2*b+1}, v{CSv+2*b}")
    for b in range(4):
        for k in range(8):
            A = vACC + 16*b + 2*k
            a(f"v_pk_fma_f32 {vr(A,2)}, {vr(M+2*k,2)}, {vr(CSv+2*b,2)}, {vr(A,2)} neg_lo:[1,0,0] neg_hi:[1,0,0]")
        for k in range(8):
            A = vACC + 16*b + 2*k
            a(f"v_pk_mul_f32 {vr(A,2)}, {vr(A,2)}, {vr(R+2*k,2)}")
        PP = P + 8*(b % 2)
        for k in range(8):
            a(f"v_cvt_pk_bf16_f32 v{PP+k}, v{vACC+16*b+2*k}, v{vACC+16*b+2*k+1}")
        a(f"buffer_store_dwordx4 {vr(PP,4)}, v{vV+b}, {sr(WS,4)}, s{sT0} offen")
        a(f"buffer_store_dwordx4 {vr(PP+4,4)}, v{vV+b}, {sr(WS,4)}, s{sT0} offen offset:640")
    a.stamp(6)
    if diag: a("s_waitcnt vmcnt(0)")
    a.stamp(7); a.stamp(9, True)
    a.dump_stamps(10, WS, sWV, WS_DIAG)
    a.label(f"{name}_end")
    a("s_endpgm")
    return a, dict(vgpr=224, sgpr=102, lds=K1_LDS, grid=256, block=512)
```

```python
from asmlib import *
from layout import *
from k1 import srd
import math

LDS_AX = 0
LDS_G = 73728
THRESH = 60.0

def lds_sync(a, vA, vT, sT, off, target, lab):
    a("s_waitcnt lgkmcnt(0)")
    a("s_mov_b64 exec, 1")
    a(f"v_mov_b32 v{vT}, 1")
    a(f"ds_add_u32 v{vA}, v{vT} offset:{off}")
    a("s_mov_b64 exec, -1")
    a.label(lab)
    a(f"ds_read_b32 v{vT}, v{vA} offset:{off}")
    a("s_waitcnt lgkmcnt(0)")
    a(f"v_readfirstlane_b32 s{sT}, v{vT}")
    a.nop(1)
    a(f"s_cmp_ge_u32 s{sT}, {target}")
    a(f"s_cbranch_scc0 {lab}")

def gen_k2(name, diag=False, R=8, do_attn=True, do_gemm=True, prio_attn=0, prio_gemm=0):
    a = Asm(); a.diag = diag
    GREG = max(R*2048, 12288)
    LDS_CNT = LDS_G + 4*GREG
    LDS_MX = LDS_CNT + 64
    LDS_TOT = LDS_MX + 4096
    sW, sWV = 3, 37
    WS, W1, B1 = 20, 12, 16
    sT0, sT1, sT2, sT3 = 28, 29, 30, 31
    sXC, sJ = 10, 11
    vL, vI, vH, vCNT = 1, 2, 3, 4
    a.label(name)
    a(f"s_cmp_ge_u32 s2, 256")
    a(f"s_cbranch_scc1 {name}_end")
    a.stamp(0); a.stamp(8, True)
    a("s_load_dwordx4 s[4:7], s[0:1], 32")
    a("s_load_dwordx2 s[8:9], s[0:1], 80")
    a("v_lshrrev_b32 v2, 6, v0")
    a(f"v_and_b32 v{vL}, 63, v0")
    a(f"v_readfirstlane_b32 s{sWV}, v2")
    a(f"s_and_b32 s{sXC}, s2, 7")
    a(f"s_lshr_b32 s{sJ}, s2, 3")
    a(f"s_and_b32 s{sW}, s{sWV}, 3")
    a(f"v_and_b32 v{vI}, 31, v{vL}")
    a(f"v_lshrrev_b32 v{vH}, 5, v{vL}")
    a(f"v_mov_b32 v{vCNT}, {LDS_CNT}")
    a(f"v_mov_b32 v6, 0")
    a(f"v_mov_b32 v7, 0")
    a(f"ds_write_b64 v{vCNT}, v[6:7]")
    a(f"ds_write_b64 v{vCNT}, v[6:7] offset:8")
    a("s_waitcnt lgkmcnt(0)")
    srd(a, WS, 8, WS_SIZE)
    a("s_barrier")
    a(f"s_cmp_ge_u32 s{sWV}, 4")
    a(f"s_cbranch_scc1 {name}_G")
    if not do_attn: a("s_endpgm")
    if prio_attn: a(f"s_setprio {prio_attn}")
    sHD, sQB, sKV, sKV0, sCnt, sQ = 32, 33, 34, 35, 36, 38
    sE_V, sE_LO, sE_HI = 40, 42, 44
    vKA, vKB, vV, t0, t1, t2, t3 = 5, 6, 7, 8, 9, 10, 11
    KVS = lambda s: 12 + 14*s
    P = 40; S = lambda i: 48 + 16*(i % 2); Q = lambda j: 80 + 6*j; O = lambda j: 128 + 16*j
    a(f"s_and_b32 s{sHD}, s{sJ}, 3")
    a(f"s_lshl_b32 s{sT0}, s{sXC}, 2")
    a(f"s_add_u32 s{sHD}, s{sHD}, s{sT0}")
    a(f"s_lshr_b32 s{sQB}, s{sJ}, 2")
    a(f"s_mov_b32 s{sE_V}, 0xfffff")
    a(f"s_mov_b32 s{sE_V+1}, 0xfffff")
    a(f"s_mov_b32 s{sE_LO}, -1")
    a(f"s_mov_b32 s{sE_LO+1}, 0")
    a(f"s_mov_b32 s{sE_HI}, 0")
    a(f"s_mov_b32 s{sE_HI+1}, -1")
    a(f"v_lshlrev_b32 v{vKA}, 4, v{vL}")
    a(f"v_lshlrev_b32 v{vKB}, 3, v{vI}")
    a(f"v_mul_u32_u24 v{t0}, 20, v{vH}")
    a(f"v_add_u32 v{t0}, v{t0}, v{vI}")
    a(f"v_lshlrev_b32 v{vV}, 4, v{t0}")
    a(f"v_lshlrev_b32 v{t1}, 2, v{vL}")
    a(f"v_lshlrev_b32 v{t2}, 2, v{vI}")
    a(f"s_lshl_b32 s{sT0}, s{sHD}, 6")
    a(f"s_lshl_b32 s{sT1}, s{sW}, 4")
    a(f"s_add_u32 s{sT1}, s{sT1}, s{sT0}")
    a(f"s_mul_i32 s{sKV0}, s{sT1}, {KVT}")
    a(f"s_add_u32 s{sKV0}, s{sKV0}, {WS_KV}")
    a(f"s_lshl_b32 s{sT1}, s{sHD}, 8")
    a(f"s_add_u32 s{sT1}, s{sT1}, {WS_KMAX}")
    a(f"buffer_load_dword v{t3}, v{t1}, {sr(WS,4)}, s{sT1} offen")
    a(f"s_lshl_b32 s{sT1}, s{sQB}, 3")
    a(f"s_add_u32 s{sQ}, s{sT0}, s{sT1}")
    a(f"s_lshl_b32 s{sT3}, s{sW}, 1")
    for j in range(8):
        a(f"s_xor_b32 s{sT0}, s{sT3}, {j}")
        a(f"s_add_u32 s{sT0}, s{sT0}, s{sQ}")
        a(f"s_lshl_b32 s{sT1}, s{sT0}, 7")
        a(f"s_add_u32 s{sT1}, s{sT1}, {WS_QN}")
        a(f"s_mov_b64 exec, {sr(sE_HI,2)}")
        a(f"buffer_load_dword v{Q(j)+4}, v{t2}, {sr(WS,4)}, s{sT1} offen")
        a(f"s_lshl_b32 s{sT1}, s{sT0}, 8")
        a(f"s_add_u32 s{sT1}, s{sT1}, {WS_QB}")
        a(f"s_mov_b64 exec, {sr(sE_LO,2)}")
        a(f"buffer_load_dwordx2 {vr(Q(j)+4,2)}, v{vKB}, {sr(WS,4)}, s{sT1} offen")
        a(f"s_lshl_b32 s{sT1}, s{sT0}, 10")
        a(f"s_add_u32 s{sT1}, s{sT1}, {WS_QA}")
        a(f"s_mov_b64 exec, -1")
        a(f"buffer_load_dwordx4 {vr(Q(j),4)}, v{vKA}, {sr(WS,4)}, s{sT1} offen")
    def kvload(s):
        K = KVS(s)
        return [f"buffer_load_dwordx4 {vr(K,4)}, v{vKA}, {sr(WS,4)}, s{sKV} offen",
                f"s_mov_b64 exec, {sr(sE_LO,2)}",
                f"buffer_load_dwordx2 {vr(K+12,2)}, v{vKB}, {sr(WS,4)}, s{sKV} offen offset:1024",
                f"s_mov_b64 exec, {sr(sE_V,2)}",
                f"buffer_load_dwordx4 {vr(K+4,4)}, v{vV}, {sr(WS,4)}, s{sKV} offen offset:1280",
                f"buffer_load_dwordx4 {vr(K+8,4)}, v{vV}, {sr(WS,4)}, s{sKV} offen offset:1920",
                f"s_mov_b64 exec, -1",
                f"s_add_u32 s{sKV}, s{sKV}, {KVT}"]
    a(f"v_cmp_eq_u32 vcc, 20, v{vI}")
    a(f"v_mov_b32 v{t0}, 0x3f803f80")
    a.nop(1)
    a(f"v_cndmask_b32 v{t1}, 0, v{t0}, vcc")
    for s in range(2):
        for k in range(4, 12): a(f"v_mov_b32 v{KVS(s)+k}, v{t1}")
        a(f"v_mov_b32 v{KVS(s)+12}, v{t0}")
        a(f"v_mov_b32 v{KVS(s)+13}, 0x3f80")
    a(f"s_mov_b32 s{sKV}, s{sKV0}")
    for x in kvload(0): a(x)
    a("s_waitcnt vmcnt(28)")
    for ror in (8, 4, 2, 1):
        a.nop(2)
        a(f"v_max_f32_dpp v{t3}, v{t3}, v{t3} row_ror:{ror} row_mask:0xf bank_mask:0xf")
    a(f"v_mov_b32 v{t0}, v{t3}")
    a.nop(2)
    a(f"v_permlane16_swap_b32 v{t3}, v{t0}")
    a(f"v_max_f32 v{t3}, v{t3}, v{t0}")
    a(f"v_mov_b32 v{t0}, v{t3}")
    a.nop(2)
    a(f"v_permlane32_swap_b32 v{t3}, v{t0}")
    a(f"v_max_f32 v{t3}, v{t3}, v{t0}")
    a(f"v_mul_f32 v{t3}, {hexf(-(1+2**-6))}, v{t3}")
    a.stamp(1)
    a("s_waitcnt vmcnt(4)")
    a.stamp(2)
    a(f"s_mov_b64 exec, {sr(sE_HI,2)}")
    a(f"v_mov_b32 v{t1}, {hexf(-THRESH)}")
    for j in range(8):
        a(f"v_mul_f32 v{Q(j)+4}, v{Q(j)+4}, v{t3}")
        a(f"v_mov_b32 v{Q(j)+5}, 0")
        a(f"v_cmp_nge_f32 {sr(48+2*j,2)}, v{Q(j)+4}, v{t1}")
    for j in range(8):
        a(f"v_cvt_pk_bf16_f32 v{Q(j)+4}, v{Q(j)+4}, v{Q(j)+5}")
    a("s_mov_b64 exec, -1")
    for j in range(1, 8):
        a(f"s_or_b32 s49, s49, s{49+2*j}")
    a(f"s_cbranch_scc1 {name}_FB")
    a.label(f"{name}_M")
    for k in range(8): a(f"v_mov_b32 v{P+k}, 0")
    for k in range(128, 256): a(f"v_mov_b32 v{k}, 0")
    def QK(n, s):
        j = n % 8; K = KVS(s)
        return (f"v_mfma_f32_32x32x16_bf16 {vr(S(n),16)}, {vr(K,4)}, {vr(Q(j),4)}, 0",
                f"v_mfma_f32_32x32x8_bf16 {vr(S(n),16)}, {vr(K+12,2)}, {vr(Q(j)+4,2)}, {vr(S(n),16)}")
    def PV(j, s, m):
        return f"v_mfma_f32_32x32x16_bf16 {vr(O(j),16)}, {vr(KVS(s)+4+4*m,4)}, {vr(P+4*m,4)}, {vr(O(j),16)}"
    a("s_waitcnt vmcnt(2)")
    for x in QK(0, 0): a(x)
    a(f"s_mov_b32 s{sCnt}, 8")
    a.nop(10)
    a.stamp(3)
    a(".p2align 3")
    a.label(f"{name}_AL")
    for s in range(2):
        for j in range(8):
            sa = S(j)
            M1, M2 = QK(j+1, s if j < 7 else 1-s)
            M3 = PV((j-1) % 8, s if j > 0 else 1-s, 1)
            M4 = PV(j, s, 0)
            e = [f"v_exp_f32 v{sa+i}, v{sa+i}" for i in range(16)]
            c = [f"v_cvt_pk_bf16_f32 v{P+i}, v{sa+2*i}, v{sa+2*i+1}" for i in range(8)]
            if j == 7: a("s_waitcnt vmcnt(2)")
            a(M1)
            for x in e[0:4]: a(x)
            a(M2)
            for x in e[4:8]: a(x)
            a(c[0]); a(c[1])
            a(M3)
            if j == 0:
                a("s_waitcnt vmcnt(0)")
                for x in kvload(1-s): a(x)
            a(c[2]); a(c[3])
            for x in e[8:12]: a(x)
            a(M4)
            if j == 7 and s == 1:
                a(f"s_sub_u32 s{sCnt}, s{sCnt}, 1")
                a(f"s_cmp_lg_u32 s{sCnt}, 0")
            for x in e[12:16]: a(x)
            for x in c[4:8]: a(x)
    a(f"s_cbranch_scc1 {name}_AL")
    a.nop(1)
    a(PV(7, 1, 1))
    a.stamp(4)
    a(f"s_mul_i32 s{sT0}, s{sW}, 18432")
    a(f"v_add_u32 v{t0}, s{sT0}, v{vKA}")
    for j in list(range(2, 7)) + [7]:
        if j == 7: a.nop(4)
        for k in range(3):
            a(f"ds_write_b128 v{t0}, {vr(O(j)+4*k,4)} offset:{LDS_AX + (j-2)*3072 + k*1024}")
    for p in range(1, 4):
        a(f"s_xor_b32 s{sT1}, s{sW}, {p}")
        a(f"s_mul_i32 s{sT1}, s{sT1}, 18432")
        a(f"s_add_u32 s{sT1}, s{sT1}, {LDS_AX + (p-1)*6144}")
        a(f"v_add_u32 v{t0+p}, s{sT1}, v{vKA}")
    lds_sync(a, vCNT, t0, sT0, 0, 4, f"{name}_s0")
    a.stamp(5)
    a("s_waitcnt vmcnt(0)")
    Rb = 12
    for p in range(1, 4):
        for jj in range(2):
            for k in range(3):
                a(f"ds_read_b128 {vr(Rb + ((p-1)*6 + jj*3 + k)*4, 4)}, v{t0+p} offset:{jj*3072 + k*1024}")
    a(f"s_lshl_b32 s{sT0}, s{sQB}, 3")
    a(f"s_lshl_b32 s{sT1}, s{sW}, 1")
    a(f"s_add_u32 s{sT0}, s{sT0}, s{sT1}")
    a(f"s_mul_i32 s{sT0}, s{sT0}, 40")
    a(f"s_lshr_b32 s{sT1}, s{sHD}, 2")
    a(f"s_add_u32 s{sT1}, s{sT1}, 32")
    a(f"s_add_u32 s{sT1}, s{sT1}, s{sT0}")
    a(f"s_add_u32 s{sT0}, s{sT0}, s{sHD}")
    a(f"s_lshl_b32 s{sT0}, s{sT0}, 10")
    a(f"s_add_u32 s{sT0}, s{sT0}, {WS_O}")
    a(f"s_lshl_b32 s{sT1}, s{sT1}, 10")
    a(f"s_add_u32 s{sT1}, s{sT1}, {WS_O}")
    a(f"s_bfe_u32 s{sT2}, s{sHD}, 0x10001")
    a(f"s_lshl_b32 s{sT2}, s{sT2}, 9")
    a(f"s_add_u32 s{sT1}, s{sT1}, s{sT2}")
    a(f"s_and_b32 s{sT2}, s{sHD}, 1")
    a(f"s_lshl_b32 s{sT2}, s{sT2}, 3")
    a(f"s_add_u32 s{sT1}, s{sT1}, s{sT2}")
    for p in range(1, 4):
        a(f"s_waitcnt lgkmcnt({(3-p)*6})")
        for jj in range(2):
            for k in range(0, 12, 2):
                A = O(jj) + k; B = Rb + ((p-1)*6 + jj*3)*4 + k
                a(f"v_pk_add_f32 {vr(A,2)}, {vr(A,2)}, {vr(B,2)}")
    u = 88
    for jj in range(2):
        a(f"v_mov_b32 v{u+2*jj}, v{O(jj)+8}")
        a(f"v_mov_b32 v{u+2*jj+1}, v{O(jj)+8}")
    a.nop(1)
    for jj in range(2):
        a(f"v_permlane32_swap_b32 v{u+2*jj}, v{u+2*jj+1}")
    for jj in range(2):
        a(f"v_rcp_f32 v{u+2*jj}, v{u+2*jj+1}")
    a.nop(1)
    for jj in range(2):
        a(f"v_mov_b32 v{u+2*jj+1}, v{u+2*jj}")
    for jj in range(2):
        for k in range(0, 12, 2):
            A = O(jj) + k
            a(f"v_pk_mul_f32 {vr(A,2)}, {vr(A,2)}, {vr(u+2*jj,2)}")
        PP = 96 + 8*jj
        for k in range(6):
            a(f"v_cvt_pk_bf16_f32 v{PP+k}, v{O(jj)+2*k}, v{O(jj)+2*k+1}")
        a(f"buffer_store_dwordx4 {vr(PP,4)}, v{vKA}, {sr(WS,4)}, s{sT0} offen")
        a(f"s_mov_b64 exec, {sr(sE_LO,2)}")
        a(f"buffer_store_dwordx2 {vr(PP+4,2)}, v{vKA}, {sr(WS,4)}, s{sT1} offen")
        a(f"s_mov_b64 exec, -1")
        if jj == 0:
            a(f"s_add_u32 s{sT0}, s{sT0}, 40960")
            a(f"s_add_u32 s{sT1}, s{sT1}, 40960")
    a.stamp(6)
    if diag: a("s_waitcnt vmcnt(0)")
    a.stamp(7); a.stamp(9, True)
    a.dump_stamps(10, WS, sWV, WS_DIAG)
    a("s_endpgm")
    a.label(f"{name}_FB")
    MX = 128
    a(f"s_mov_b64 exec, {sr(sE_HI,2)}")
    for j in range(8): a(f"v_mov_b32 v{Q(j)+4}, 0")
    a("s_mov_b64 exec, -1")
    for j in range(8): a(f"v_mov_b32 v{MX+j}, 0xff800000")
    a(f"s_mov_b32 s{sCnt}, 16")
    a.label(f"{name}_FL")
    a("s_waitcnt vmcnt(0)")
    for j in range(8):
        for x in QK(j, 0): a(x)
        a.nop(12)
        for k in range(0, 16, 2):
            a(f"v_max3_f32 v{MX+j}, v{MX+j}, v{S(j)+k}, v{S(j)+k+1}")
    for x in kvload(0): a(x)
    a(f"s_sub_u32 s{sCnt}, s{sCnt}, 1")
    a(f"s_cmp_lg_u32 s{sCnt}, 0")
    a(f"s_cbranch_scc1 {name}_FL")
    a("s_waitcnt vmcnt(0)")
    a(f"s_mov_b32 s{sKV}, s{sKV0}")
    for x in kvload(0): a(x)
    for j in range(8):
        a(f"v_mov_b32 v{MX+8+j}, v{MX+j}")
    a.nop(1)
    for j in range(8):
        a(f"v_permlane32_swap_b32 v{MX+j}, v{MX+8+j}")
    for j in range(8):
        a(f"v_max_f32 v{MX+j}, v{MX+j}, v{MX+8+j}")
    a(f"s_lshl_b32 s{sT3}, s{sW}, 1")
    a(f"v_lshlrev_b32 v{t2}, 2, v{vI}")
    for j in range(8):
        a(f"s_xor_b32 s{sT0}, s{sT3}, {j}")
        a(f"s_lshl_b32 s{sT0}, s{sT0}, 7")
        a(f"s_add_u32 s{sT0}, s{sT0}, {LDS_MX}")
        a(f"v_add_u32 v{MX+8+j}, s{sT0}, v{t2}")
    a(f"s_lshl_b32 s{sT1}, s{sW}, 10")
    for j in range(8):
        a(f"v_add_u32 v{t0}, s{sT1}, v{MX+8+j}")
        a(f"ds_write_b32 v{t0}, v{MX+j}")
    lds_sync(a, vCNT, t0, sT0, 8, 4, f"{name}_s2")
    for j in range(8):
        for ww in range(4):
            a(f"ds_read_b32 v{MX+16+4*j+ww}, v{MX+8+j} offset:{ww*1024}")
    a("s_waitcnt lgkmcnt(0)")
    a(f"s_mov_b64 exec, {sr(sE_HI,2)}")
    for j in range(8):
        b = MX+16+4*j
        a(f"v_max3_f32 v{b}, v{b}, v{b+1}, v{b+2}")
        a(f"v_max_f32 v{b}, v{b}, v{b+3}")
        a(f"v_sub_f32 v{b}, 0, v{b}")
        a(f"v_and_b32 v{b+1}, 0xffff0000, v{b}")
        a(f"v_sub_f32 v{b}, v{b}, v{b+1}")
        a(f"v_and_b32 v{b+2}, 0xffff0000, v{b}")
        a(f"v_sub_f32 v{b}, v{b}, v{b+2}")
        a(f"v_lshrrev_b32 v{b+1}, 16, v{b+1}")
        a(f"v_or_b32 v{Q(j)+4}, v{b+1}, v{b+2}")
        a(f"v_lshrrev_b32 v{Q(j)+5}, 16, v{b}")
    a("s_mov_b64 exec, -1")
    a(f"s_branch {name}_M")
    a.label(f"{name}_G")
    if not do_gemm: a("s_endpgm")
    a(f"s_cmp_ge_u32 s{sJ}, 30")
    a(f"s_cbranch_scc1 {name}_end")
    if prio_gemm: a(f"s_setprio {prio_gemm}")
    sDT, sFT, sH0, sH1, sWo, sM, sCnt = 32, 33, 34, 35, 36, 38, 39
    vDA0, vDA1, vBO, vR0, vR1 = 5, 6, 7, 8, 9
    t0, t1, t2, t3 = 10, 11, 12, 13
    BI = 16
    AF = lambda s: 40 + 8*s
    BF = lambda s: 64 + 8*s
    ACC = 128
    srd(a, W1, 4, 2048*1536*2)
    srd(a, B1, 6, 1536*2)
    a(f"s_mul_i32 s{sT0}, s{sJ}, 52")
    a(f"s_lshr_b32 s{sT0}, s{sT0}, 8")
    a(f"s_mul_i32 s{sT1}, s{sT0}, 5")
    a(f"s_sub_u32 s{sT1}, s{sJ}, s{sT1}")
    a(f"s_and_b32 s{sT2}, s{sXC}, 1")
    a(f"s_mul_i32 s{sT2}, s{sT2}, 5")
    a(f"s_add_u32 s{sDT}, s{sT1}, s{sT2}")
    a(f"s_lshr_b32 s{sT2}, s{sXC}, 1")
    a(f"s_mul_i32 s{sT2}, s{sT2}, 6")
    a(f"s_add_u32 s{sFT}, s{sT0}, s{sT2}")
    a(f"s_and_b32 s{sT0}, s{sW}, 1")
    a(f"s_lshl_b32 s{sT1}, s{sDT}, 1")
    a(f"s_add_u32 s{sT1}, s{sT1}, s{sT0}")
    a(f"s_xor_b32 s{sT2}, s{sT1}, 1")
    a(f"s_lshl_b32 s{sT3}, s{sW}, 15")
    a(f"s_add_u32 s{sT3}, s{sT3}, {WS_HT}")
    a(f"s_lshl_b32 s{sH0}, s{sT1}, 17")
    a(f"s_add_u32 s{sH0}, s{sH0}, s{sT3}")
    a(f"s_lshl_b32 s{sH1}, s{sT2}, 17")
    a(f"s_add_u32 s{sH1}, s{sH1}, s{sT3}")
    sDB = 40
    a(f"s_mov_b32 s{sDB}, s{sT1}")
    a(f"s_mul_i32 s{sWo}, s{sW}, {512*3072}")
    a(f"s_lshl_b32 s{sT0}, s{sFT}, 7")
    a(f"s_add_u32 s{sWo}, s{sWo}, s{sT0}")
    a(f"s_mul_i32 s{sM}, s{sW}, {GREG}")
    a(f"s_add_u32 s{sM}, s{sM}, {LDS_G}")
    a(f"v_lshlrev_b32 v{vBO}, 4, v{vL}")
    a(f"v_lshrrev_b32 v{t0}, 3, v{vL}")
    a(f"v_mul_u32_u24 v{t0}, 3072, v{t0}")
    a(f"v_bfe_u32 v{t1}, v{vL}, 4, 1")
    a(f"v_lshlrev_b32 v{t1}, 2, v{t1}")
    a(f"v_and_b32 v{t2}, 7, v{vL}")
    a(f"v_xor_b32 v{t1}, v{t1}, v{t2}")
    a(f"v_lshl_add_u32 v{vDA0}, v{t1}, 4, v{t0}")
    a(f"v_add_u32 v{vDA1}, {8*3072}, v{vDA0}")
    def gload(slot):
        return [f"s_add_u32 m0, s{sM}, {slot*2048}",
                f"buffer_load_dwordx4 {vr(BF(slot),4)}, v{vBO}, {sr(WS,4)}, s{sH0} offen",
                f"buffer_load_dwordx4 v{vDA0}, {sr(W1,4)}, s{sWo} offen lds",
                f"s_add_u32 m0, s{sM}, {slot*2048+1024}",
                f"buffer_load_dwordx4 {vr(BF(slot)+4,4)}, v{vBO}, {sr(WS,4)}, s{sH1} offen",
                f"buffer_load_dwordx4 v{vDA1}, {sr(W1,4)}, s{sWo} offen lds",
                f"s_add_u32 s{sH0}, s{sH0}, 1024",
                f"s_add_u32 s{sH1}, s{sH1}, 1024",
                f"s_add_u32 s{sWo}, s{sWo}, {16*3072}"]
    a(f"s_lshr_b32 s{sT0}, s{sW}, 1")
    a(f"s_lshl_b32 s{sT1}, s{sFT}, 1")
    a(f"s_add_u32 s{sT1}, s{sT1}, s{sT0}")
    sFB = 41
    a(f"s_mov_b32 s{sFB}, s{sT1}")
    a(f"s_lshl_b32 s{sT1}, s{sT1}, 6")
    a(f"v_lshlrev_b32 v{t3}, 3, v{vH}")
    for i in range(4):
        a(f"buffer_load_dwordx2 {vr(BI+2*i,2)}, v{t3}, {sr(B1,4)}, s{sT1} offen offset:{16*i}")
    for n in range(R-1):
        for x in gload(n): a(x)
    a(f"v_bfe_u32 v{t0}, v{vL}, 2, 2")
    a(f"v_lshl_add_u32 v{t0}, v{vH}, 3, v{t0}")
    a(f"v_lshlrev_b32 v{t0}, 7, v{t0}")
    a(f"v_bfe_u32 v{t1}, v{vL}, 4, 1")
    a(f"v_lshl_add_u32 v{t0}, v{t1}, 5, v{t0}")
    a(f"v_and_b32 v{t1}, 3, v{vL}")
    a(f"v_lshl_add_u32 v{t0}, v{t1}, 3, v{t0}")
    a(f"v_add_u32 v{t0}, s{sM}, v{t0}")
    a(f"v_bfe_u32 v{t1}, v{vL}, 3, 1")
    a(f"v_xor_b32 v{t1}, s{sT0}, v{t1}")
    a(f"v_lshl_add_u32 v{vR0}, v{t1}, 6, v{t0}")
    a(f"v_xor_b32 v{t1}, 1, v{t1}")
    a(f"v_lshl_add_u32 v{vR1}, v{t1}, 6, v{t0}")
    for k in range(64): a(f"v_mov_b32 v{ACC+k}, 0")
    def trs(slot, s):
        return [f"ds_read_b64_tr_b16 {vr(AF(s)+4*fb+2*h,2)}, v{vR0+fb} offset:{slot*2048+h*512}" for fb in range(2) for h in range(2)]
    a.stamp(1)
    a(f"s_waitcnt vmcnt({4*(R-2)})")
    a.stamp(2)
    for x in trs(0, 0): a(x)
    a(f"s_mov_b32 s{sCnt}, {32//R - 1}")
    def gbody(last):
        for n in range(R):
            if not last or n == 0:
                for x in gload((n-1) % R): a(x)
            if not last or n < R-1:
                a(f"s_waitcnt vmcnt({4*(R-2-(n if last else 0))})")
                for x in trs((n+1) % R, (n+1) % 2): a(x)
                a("s_waitcnt lgkmcnt(4)")
            else:
                a("s_waitcnt lgkmcnt(0)")
            for fb in range(2):
                for db in range(2):
                    C = ACC + 16*(2*fb+db)
                    a(f"v_mfma_f32_32x32x16_bf16 {vr(C,16)}, {vr(AF(n%2)+4*fb,4)}, {vr(BF(n)+4*db,4)}, {vr(C,16)}")
    a.label(f"{name}_GL")
    gbody(False)
    a(f"s_sub_u32 s{sCnt}, s{sCnt}, 1")
    a(f"s_cmp_lg_u32 s{sCnt}, 0")
    a(f"s_cbranch_scc1 {name}_GL")
    gbody(True)
    a.stamp(3)
    a("s_waitcnt vmcnt(0) lgkmcnt(0)")
    a.stamp(4)
    a(f"v_add_u32 v{t0}, s{sM}, v{vBO}")
    a.nop(8)
    for p in range(1, 4):
        for k in range(4):
            a(f"ds_write_b128 v{t0}, {vr(ACC+16*p+4*k,4)} offset:{(p-1)*4096+k*1024}")
    for p in range(1, 4):
        a(f"s_xor_b32 s{sT1}, s{sW}, {p}")
        a(f"s_mul_i32 s{sT1}, s{sT1}, {GREG}")
        a(f"s_add_u32 s{sT1}, s{sT1}, {LDS_G + (p-1)*4096}")
        a(f"v_add_u32 v{t0+p}, s{sT1}, v{vBO}")
    BU = 24
    for i in range(8):
        a(f"v_lshlrev_b32 v{BU+2*i}, 16, v{BI+i}")
        a(f"v_and_b32 v{BU+2*i+1}, 0xffff0000, v{BI+i}")
    for k in range(0, 16, 2):
        a(f"v_pk_add_f32 {vr(ACC+k,2)}, {vr(ACC+k,2)}, {vr(BU+k,2)}")
    lds_sync(a, vCNT, t0, sT0, 4, 4, f"{name}_s1")
    a.stamp(5)
    RB = 64
    for p in range(1, 4):
        for k in range(4):
            a(f"ds_read_b128 {vr(RB+16*(p-1)+4*k,4)}, v{t0+p} offset:{k*1024}")
    a(f"v_lshrrev_b32 v{BU}, 4, v{vI}")
    a(f"v_mul_u32_u24 v{BU}, {96*512}, v{BU}")
    a(f"v_lshl_add_u32 v{BU}, v{vH}, 8, v{BU}")
    a(f"v_and_b32 v{BU+1}, 15, v{vI}")
    a(f"v_lshl_add_u32 v{BU}, v{BU+1}, 4, v{BU}")
    a(f"s_mul_i32 s{sT0}, s{sDB}, {2*96*512}")
    a(f"s_lshl_b32 s{sT1}, s{sFB}, 10")
    a(f"s_add_u32 s{sT0}, s{sT0}, s{sT1}")
    a(f"s_add_u32 s{sT0}, s{sT0}, {WS_U}")
    k0 = -2*math.sqrt(2/math.pi)*math.log2(math.e)
    a(f"s_mov_b32 s{sT2}, {hexf(k0*0.044715)}")
    a(f"v_mov_b32 v{BU+2}, {hexf(k0)}")
    for p in range(1, 4):
        a(f"s_waitcnt lgkmcnt({(3-p)*4})")
        for k in range(0, 16, 2):
            a(f"v_pk_add_f32 {vr(ACC+k,2)}, {vr(ACC+k,2)}, {vr(RB+16*(p-1)+k,2)}")
    G = RB
    for k in range(16): a(f"v_mul_f32 v{G+k}, v{ACC+k}, v{ACC+k}")
    for k in range(16): a(f"v_fma_f32 v{G+k}, v{G+k}, s{sT2}, v{BU+2}")
    for k in range(16): a(f"v_mul_f32 v{G+k}, v{G+k}, v{ACC+k}")
    for k in range(16): a(f"v_exp_f32 v{G+k}, v{G+k}")
    for k in range(16): a(f"v_add_f32 v{G+k}, 1.0, v{G+k}")
    for k in range(16): a(f"v_rcp_f32 v{G+k}, v{G+k}")
    for k in range(16): a(f"v_mul_f32 v{G+k}, v{G+k}, v{ACC+k}")
    for k in range(8): a(f"v_cvt_pk_bf16_f32 v{G+16+k}, v{G+2*k}, v{G+2*k+1}")
    a(f"buffer_store_dwordx4 {vr(G+16,4)}, v{BU}, {sr(WS,4)}, s{sT0} offen")
    a(f"buffer_store_dwordx4 {vr(G+20,4)}, v{BU}, {sr(WS,4)}, s{sT0} offen offset:512")
    a.stamp(6)
    if diag: a("s_waitcnt vmcnt(0)")
    a.stamp(7); a.stamp(9, True)
    a.dump_stamps(10, WS, sWV, WS_DIAG)
    a.label(f"{name}_end")
    a("s_endpgm")
    return a, dict(vgpr=256, sgpr=102, lds=LDS_TOT, grid=256, block=512)
```

```python
from asmlib import *
from layout import *
from k1 import srd

def gen_k3(name, diag=False, R=4):
    a = Asm(); a.diag = diag
    SLAB = 25600
    LDS_R = 4*SLAB
    LDS_TOT = LDS_R + 4*R*2048
    sW = 3
    X, WO, W2, B2, OUT, WS = 40, 12, 16, 44, 48, 20
    sT0, sT1, sT2, sT3 = 28, 29, 30, 31
    sST, sDT, sSL, sM, sU, sW2, sCnt, sO = 10, 11, 32, 33, 34, 35, 36, 37
    vL, vI, vH = 1, 2, 3
    t0, t1, t2, t3 = 4, 5, 6, 7
    vDW = 8
    vF16, vU0, vU2, vD0, vD1, vR0, vR1, vRM, vRL = 13, 14, 15, 16, 17, 18, 19, 20, 21
    vXO = 22
    vBO = 27
    XB = 28
    TF = lambda s: 44 + 12*s
    UF = lambda s: 68 + 12*s
    OF = lambda n: 68 + 12*R + 8*n - 0
    ACC = 160
    OF = lambda n: 80 + 8*n
    a.label(name)
    a(f"s_cmp_ge_u32 s2, 256")
    a(f"s_cbranch_scc1 {name}_end")
    a.stamp(0); a.stamp(8, True)
    a("s_load_dwordx2 s[4:5], s[0:1], 0")
    a("s_load_dwordx2 s[6:7], s[0:1], 16")
    a("s_load_dwordx4 s[52:55], s[0:1], 48")
    a("s_load_dwordx2 s[56:57], s[0:1], 64")
    a("s_load_dwordx2 s[8:9], s[0:1], 80")
    a("v_lshrrev_b32 v2, 6, v0")
    a(f"v_and_b32 v{vL}, 63, v0")
    a(f"v_readfirstlane_b32 s{sW}, v2")
    a(f"s_and_b32 s{sT0}, s2, 7")
    a(f"s_lshr_b32 s{sT1}, s2, 3")
    a(f"s_lshr_b32 s{sT2}, s{sT0}, 1")
    a(f"s_lshl_b32 s{sT2}, s{sT2}, 3")
    a(f"s_and_b32 s{sT3}, s{sT1}, 7")
    a(f"s_add_u32 s{sST}, s{sT2}, s{sT3}")
    a(f"s_and_b32 s{sT0}, s{sT0}, 1")
    a(f"s_lshl_b32 s{sT0}, s{sT0}, 2")
    a(f"s_lshr_b32 s{sT1}, s{sT1}, 3")
    a(f"s_add_u32 s{sDT}, s{sT0}, s{sT1}")
    a(f"v_and_b32 v{vI}, 31, v{vL}")
    a(f"v_lshrrev_b32 v{vH}, 5, v{vL}")
    a(f"s_mul_i32 s{sSL}, s{sW}, {SLAB}")
    a(f"s_mul_i32 s{sM}, s{sW}, {R*2048}")
    a(f"s_add_u32 s{sM}, s{sM}, {LDS_R}")
    for j in range(5):
        a(f"v_add_u32 v{t0}, {64*j}, v{vL}")
        a(f"v_mul_u32_u24 v{t1}, 6554, v{t0}")
        a(f"v_lshrrev_b32 v{t1}, 16, v{t1}")
        a(f"v_mul_u32_u24 v{t2}, 10, v{t1}")
        a(f"v_sub_u32 v{t0}, v{t0}, v{t2}")
        a(f"v_mul_u32_u24 v{t1}, 1280, v{t1}")
        a(f"v_lshl_add_u32 v{vDW+j}, v{t0}, 4, v{t1}")
    a(f"v_lshlrev_b32 v{vF16}, 4, v{vL}")
    sWO = 38
    a(f"s_mul_i32 s{sWO}, s{sW}, {160*1280}")
    a(f"s_mul_i32 s{sT0}, s{sDT}, 160")
    a(f"s_add_u32 s{sWO}, s{sWO}, s{sT0}")
    a(f"s_mul_i32 s{sO}, s{sST}, {2*40*1024}")
    a(f"s_add_u32 s{sO}, s{sO}, {WS_O}")
    a(f"s_lshl_b32 s{sT1}, s{sW}, 13")
    a(f"s_lshl_b32 s{sT2}, s{sW}, 11")
    a(f"s_add_u32 s{sT2}, s{sT2}, s{sO}")
    a(f"s_add_u32 s{sT2}, s{sT2}, {32*1024}")
    a(f"s_add_u32 s{sO}, s{sO}, s{sT1}")
    a("s_waitcnt lgkmcnt(0)")
    a.stamp(1)
    srd(a, WO, 6, 640*640*2)
    srd(a, WS, 8, WS_SIZE)
    def oload(n):
        base = sO if n < 8 else sT2
        k = n if n < 8 else n - 8
        a(f"s_add_u32 s{sT0}, s{base}, {k*1024}")
        a(f"s_add_u32 s{sT1}, s{base}, {k*1024 + 40960}")
        a(f"buffer_load_dwordx4 {vr(OF(n),4)}, v{vF16}, {sr(WS,4)}, s{sT0} offen")
        a(f"buffer_load_dwordx4 {vr(OF(n)+4,4)}, v{vF16}, {sr(WS,4)}, s{sT1} offen")
    def wdma(jj):
        a(f"s_add_u32 m0, s{sSL}, {jj*1024}")
        if jj % 5 == 0 and jj: a(f"s_add_u32 s{sWO}, s{sWO}, {32*1280}")
        else: a("s_nop 0")
        a(f"buffer_load_dwordx4 v{vDW + jj % 5}, {sr(WO,4)}, s{sWO} offen lds")
    vmlist = []
    jj = 0
    need = {}
    for n in range(10):
        lim = -(-(200*n+160)//64) if n < 8 else 25
        while jj < min(lim, 25):
            wdma(jj); vmlist.append(("w", jj)); jj += 1
        oload(n); vmlist += [("o", n), ("o", n)]
        need[n] = len(vmlist)
    a.stamp(2)
    srd(a, W2, 52, 1536*2048*2)
    srd(a, X, 4, 2048*640*2)
    srd(a, B2, 54, 2048*2)
    srd(a, OUT, 56, 2048*640*2)
    a(f"v_lshrrev_b32 v{t0}, 4, v{vI}")
    a(f"v_mul_u32_u24 v{t0}, {96*512}, v{t0}")
    a(f"v_and_b32 v{t1}, 15, v{vI}")
    a(f"v_lshlrev_b32 v{t1}, 4, v{t1}")
    a(f"v_lshl_add_u32 v{vU2}, v{vH}, 8, v{t1}")
    a(f"v_add_u32 v{vU0}, v{vU2}, v{t0}")
    a(f"s_mul_i32 s{sU}, s{sDT}, {5*96*512}")
    a(f"s_mul_i32 s{sT0}, s{sW}, {24*512}")
    a(f"s_add_u32 s{sU}, s{sU}, s{sT0}")
    a(f"s_add_u32 s{sU}, s{sU}, {WS_U}")
    a(f"v_lshrrev_b32 v{t0}, 3, v{vL}")
    a(f"v_lshlrev_b32 v{t0}, 12, v{t0}")
    a(f"v_bfe_u32 v{t1}, v{vL}, 4, 1")
    a(f"v_lshlrev_b32 v{t1}, 2, v{t1}")
    a(f"v_and_b32 v{t2}, 7, v{vL}")
    a(f"v_xor_b32 v{t1}, v{t1}, v{t2}")
    a(f"v_lshl_add_u32 v{vD0}, v{t1}, 4, v{t0}")
    a(f"v_add_u32 v{vD1}, {8*4096}, v{vD0}")
    a(f"s_mul_i32 s{sW2}, s{sW}, {384*4096}")
    a(f"s_lshl_b32 s{sT0}, s{sST}, 7")
    a(f"s_add_u32 s{sW2}, s{sW2}, s{sT0}")
    sE = 58
    a(f"s_mov_b32 s{sE}, 0xffff")
    a(f"s_mov_b32 s{sE+1}, 0xffff")
    def UFr(k): return 68 if k == 0 else 80 + 12*(k-1)
    def w2dma(slot):
        return [f"s_add_u32 m0, s{sM}, {slot*2048}", "s_nop 0",
                f"buffer_load_dwordx4 v{vD0}, {sr(W2,4)}, s{sW2} offen lds",
                f"s_add_u32 m0, s{sM}, {slot*2048+1024}", f"s_nop 0",
                f"buffer_load_dwordx4 v{vD1}, {sr(W2,4)}, s{sW2} offen lds",
                f"s_add_u32 s{sW2}, s{sW2}, {16*4096}"]
    def uload(slot):
        U = UFr(slot)
        return [f"s_add_u32 s{sT0}, s{sU}, {2*96*512}",
                f"s_add_u32 s{sT1}, s{sU}, {4*96*512}",
                f"buffer_load_dwordx4 {vr(U,4)}, v{vU0}, {sr(WS,4)}, s{sU} offen",
                f"buffer_load_dwordx4 {vr(U+4,4)}, v{vU0}, {sr(WS,4)}, s{sT0} offen",
                f"buffer_load_dwordx4 {vr(U+8,4)}, v{vU2}, {sr(WS,4)}, s{sT1} offen",
                f"s_add_u32 s{sU}, s{sU}, 512"]
    for x in w2dma(0) + uload(0): a(x)
    vmlist += [("p2", 0)]*5
    a(f"v_bfe_u32 v{t0}, v{vL}, 2, 2")
    a(f"v_bfe_u32 v{t1}, v{vL}, 4, 1")
    a(f"v_lshlrev_b32 v{t1}, 5, v{t1}")
    a(f"v_and_b32 v{t2}, 3, v{vL}")
    a(f"v_lshl_add_u32 v{t1}, v{t2}, 3, v{t1}")
    a(f"v_lshl_add_u32 v{t2}, v{vH}, 2, v{t0}")
    a(f"v_mul_u32_u24 v{t3}, 160, v{t2}")
    a(f"v_add3_u32 v{vRM}, v{t3}, v{t1}, s{sSL}")
    a(f"v_mul_u32_u24 v{t3}, 40, v{vH}")
    a(f"v_add3_u32 v{t3}, v{t3}, v{t0}, 16")
    a(f"v_mul_u32_u24 v{t3}, 160, v{t3}")
    a(f"v_add3_u32 v{vRL}, v{t3}, v{t1}, s{sSL}")
    a(f"v_lshlrev_b32 v{t2}, 7, v{t2}")
    a(f"v_add3_u32 v{t2}, v{t2}, v{t1}, s{sM}")
    a(f"v_bfe_u32 v{t3}, v{vL}, 3, 1")
    a(f"v_lshl_add_u32 v{vR0}, v{t3}, 6, v{t2}")
    a(f"v_xor_b32 v{t3}, 1, v{t3}")
    a(f"v_lshl_add_u32 v{vR1}, v{t3}, 6, v{t2}")
    for k in range(96): a(f"v_mov_b32 v{ACC+k}, 0")
    def tr1(n, s):
        L = []
        for db in range(3):
            for aa in range(2):
                if n < 8: L.append(f"ds_read_b64_tr_b16 {vr(TF(s)+4*db+2*aa,2)}, v{vRM} offset:{(20*n+8*aa)*160+db*64}")
                else: L.append(f"ds_read_b64_tr_b16 {vr(TF(s)+4*db+2*aa,2)}, v{vRL} offset:{(80*(n-8)+20*aa)*160+db*64}")
        return L
    def tr2(slot, s):
        return [f"ds_read_b64_tr_b16 {vr(TF(s)+4*sb+2*aa,2)}, v{vR0+sb} offset:{slot*2048+aa*1024}" for sb in range(2) for aa in range(2)]
    def C(db, sb): return ACC + 16*(2*db+sb)
    a.stamp(3)
    a(f"s_waitcnt vmcnt({len(vmlist)-need[0]})")
    for x in tr1(0, 0): a(x)
    for n in range(10):
        if n < 9:
            a(f"s_waitcnt vmcnt({len(vmlist)-need[n+1]})")
            for x in tr1(n+1, (n+1) % 2): a(x)
            a("s_waitcnt lgkmcnt(6)")
        else:
            a(f"s_waitcnt vmcnt({5*(R-2)})")
            for x in tr2(0, 0): a(x)
            a("s_waitcnt lgkmcnt(4)")
        for db in range(3):
            for sb in range(2):
                a(f"v_mfma_f32_32x32x16_bf16 {vr(C(db,sb),16)}, {vr(TF(n%2)+4*db,4)}, {vr(OF(n)+4*sb,4)}, {vr(C(db,sb),16)}")
        for k in range(1, R-1):
            if n == -(-12*k//8) - 1:
                for x in w2dma(k) + uload(k): a(x)
                vmlist += [("p2", k)]*5
    a.stamp(4)
    def body(last):
        for n in range(R):
            if not last or n == 0:
                for x in w2dma((n-1) % R) + uload((n-1) % R): a(x)
            if last and n == 0:
                epi_loads()
            extra = 10 if last else 0
            if not last or n < R-1:
                a(f"s_waitcnt vmcnt({5*(R-2-(n if last else 0)) + extra})")
                for x in tr2((n+1) % R, (n+1) % 2): a(x)
                a("s_waitcnt lgkmcnt(4)")
            else:
                a("s_waitcnt lgkmcnt(0)")
            for db in range(3):
                for sb in range(2):
                    a(f"v_mfma_f32_32x32x16_bf16 {vr(C(db,sb),16)}, {vr(UFr(n)+4*db,4)}, {vr(TF(n%2)+4*sb,4)}, {vr(C(db,sb),16)}")
    def epi_loads():
        a(f"s_mul_i32 s{sT2}, s{sST}, {64*1280}")
        a(f"s_mul_i32 s{sT3}, s{sDT}, 160")
        a(f"s_add_u32 s{sT2}, s{sT2}, s{sT3}")
        a(f"s_lshl_b32 s{sT3}, s{sST}, 7")
        for k in range(5):
            a(f"v_add_u32 v{t0}, {256*k}, v0")
            a(f"v_mul_u32_u24 v{t1}, 3277, v{t0}")
            a(f"v_lshrrev_b32 v{t1}, 16, v{t1}")
            a(f"v_mul_u32_u24 v{t2}, 20, v{t1}")
            a(f"v_sub_u32 v{t0}, v{t0}, v{t2}")
            a(f"v_mul_u32_u24 v{t2}, 1280, v{t1}")
            a(f"v_lshl_add_u32 v{vXO+k}, v{t0}, 3, v{t2}")
            a(f"v_mul_u32_u24 v{t2}, 336, v{t1}")
            a(f"v_lshl_add_u32 v{vDW+k}, v{t0}, 4, v{t2}")
            a(f"v_lshlrev_b32 v{t1}, 1, v{t1}")
            a(f"buffer_load_dwordx2 {vr(XB+2*k,2)}, v{vXO+k}, {sr(X,4)}, s{sT2} offen")
            a(f"buffer_load_ushort v{XB+10+k}, v{t1}, {sr(B2,4)}, s{sT3} offen")
    a(f"s_mov_b32 s{sCnt}, {24//R - 1}")
    a.label(f"{name}_L2")
    body(False)
    a(f"s_sub_u32 s{sCnt}, s{sCnt}, 1")
    a(f"s_cmp_lg_u32 s{sCnt}, 0")
    a(f"s_cbranch_scc1 {name}_L2")
    body(True)
    a.stamp(5)
    a(f"v_mul_u32_u24 v{t0}, 336, v{vI}")
    a(f"v_lshl_add_u32 v{t0}, v{vH}, 4, v{t0}")
    a(f"v_add_u32 v{t0}, s{sSL}, v{t0}")
    a.nop(8)
    for db in range(3):
        for sb in range(2):
            for i in range(4 if db < 2 else 2):
                if db == 2 and sb == 1 and i == 0: a.nop(2)
                a(f"ds_write_b128 v{t0}, {vr(C(db,sb)+4*i,4)} offset:{sb*32*336 + (32*db+8*i)*4}")
    for k in range(5):
        a(f"v_add_u32 v{44+k}, {2*SLAB}, v{vDW+k}")
    a("s_waitcnt lgkmcnt(0)")
    a("s_barrier")
    a.stamp(6)
    RB = 64
    for k in range(5):
        a(f"ds_read_b128 {vr(RB+16*k,4)}, v{vDW+k}")
        a(f"ds_read_b128 {vr(RB+16*k+4,4)}, v{vDW+k} offset:{SLAB}")
        a(f"ds_read_b128 {vr(RB+16*k+8,4)}, v{44+k}")
        a(f"ds_read_b128 {vr(RB+16*k+12,4)}, v{44+k} offset:{SLAB}")
    a("s_waitcnt vmcnt(0)")
    XU = 160
    for k in range(5):
        b = XU + 4*k
        a(f"v_lshlrev_b32 v{XB+10+k}, 16, v{XB+10+k}")
        a(f"v_lshlrev_b32 v{b}, 16, v{XB+2*k}")
        a(f"v_and_b32 v{b+1}, 0xffff0000, v{XB+2*k}")
        a(f"v_lshlrev_b32 v{b+2}, 16, v{XB+2*k+1}")
        a(f"v_and_b32 v{b+3}, 0xffff0000, v{XB+2*k+1}")
        for i in range(4): a(f"v_add_f32 v{b+i}, v{b+i}, v{XB+10+k}")
    for k in range(5):
        b = XU + 4*k; r = RB + 16*k
        a(f"s_waitcnt lgkmcnt({min(15, 4*(4-k))})")
        for i in range(0, 4, 2):
            a(f"v_pk_add_f32 {vr(r+i,2)}, {vr(r+i,2)}, {vr(r+4+i,2)}")
            a(f"v_pk_add_f32 {vr(r+8+i,2)}, {vr(r+8+i,2)}, {vr(r+12+i,2)}")
            a(f"v_pk_add_f32 {vr(b+i,2)}, {vr(b+i,2)}, {vr(r+i,2)}")
            a(f"v_pk_add_f32 {vr(b+i,2)}, {vr(b+i,2)}, {vr(r+8+i,2)}")
        a(f"v_cvt_pk_bf16_f32 v{b}, v{b}, v{b+1}")
        a(f"v_cvt_pk_bf16_f32 v{b+1}, v{b+2}, v{b+3}")
        a(f"buffer_store_dwordx2 {vr(b,2)}, v{vXO+k}, {sr(OUT,4)}, s{sT2} offen")
    if diag: a("s_waitcnt vmcnt(0)")
    a.stamp(7); a.stamp(9, True)
    a.dump_stamps(10, WS, sW, WS_DIAG)
    a.label(f"{name}_end")
    a("s_endpgm")
    return a, dict(vgpr=256, sgpr=102, lds=LDS_TOT, grid=256, block=256)
```

```python
WS_KMAX = 0x4000
WS_QN   = 0x8000
WS_QA   = 0x100000
WS_QB   = 0x300000
WS_KV   = 0x400000
WS_HT   = 0x900000
WS_U    = 0xC00000
WS_O    = 0xE00000
WS_Y    = 0x1100000
WS_DIAG = 0x1800000
WS_SIZE = 0x2000000
KVT = 2560
import math
QSCALE = math.log2(math.e) / math.sqrt(20.0)
import struct
def f2u(f): return struct.unpack("<I", struct.pack("<f", f))[0]
def hexf(f): return "0x%08x" % f2u(f)
```

```python
import gen, k1, k2, k3
from asmlib import *
A = ("qkv_kernel",) + k1.gen_k1("qkv_kernel", rot=False)
B = ("attn_kernel",) + k2.gen_k2("attn_kernel")
C = ("fin_kernel",) + k3.gen_k3("fin_kernel")
e = Asm(); e.label("empty_kernel"); e("s_endpgm")
E = ("empty_kernel", e, dict(vgpr=32, sgpr=16, lds=0, grid=256, block=256))
gen.assemble([A, B, C, E], "v_b.s")
gen.assemble([A, B, C, E, E, E], "v_c.s")
gen.assemble([A, A, B, C], "v_d.s")
gen.assemble([E, A, B, C], "v_e.s")
gen.assemble([A, B, B, C], "v_f.s")
gen.assemble([A, B, C, C], "v_g.s")
```

```python
import re
class Asm:
    def __init__(self):
        self.lines = []
    def __call__(self, s):
        for l in s.split("\n"):
            l = l.strip()
            if l: self.lines.append(l)
    def label(self, n): self.lines.append(n + ":")
    def nop(self, n):
        while n > 0:
            k = min(n, 16); self.lines.append(f"s_nop {k-1}"); n -= k
    diag = False
    def stamp(self, i, real=False):
        if self.diag:
            self.lines.append(f"s_mem{'real' if real else ''}time s[{80+2*i}:{81+2*i}]")
    def dump_stamps(self, n, ws_srd, sW, base, wave=None):
        if not self.diag: return
        L = self.lines.append
        L("s_waitcnt lgkmcnt(0)")
        L("s_mov_b64 exec, 1")
        L(f"s_lshl_b32 s100, s2, 4")
        L(f"s_add_u32 s100, s100, s{sW}")
        L(f"s_lshl_b32 s100, s100, 6")
        L(f"s_add_u32 s100, s100, {base}")
        L("v_mov_b32 v0, 0")
        for i in range(n):
            L(f"v_mov_b32 v1, s{80+2*i}")
            L(f"buffer_store_dword v1, v0, s[{ws_srd}:{ws_srd+3}], s100 offen offset:{4*i}")
        L("s_waitcnt vmcnt(0)")
    def text(self):
        return "\n".join((l if l.endswith(":") or l.startswith(".") else "    " + l) for l in self.lines) + "\n"

def vr(a, n=1): return f"v{a}" if n == 1 else f"v[{a}:{a+n-1}]"
def sr(a, n=1): return f"s{a}" if n == 1 else f"s[{a}:{a+n-1}]"

TRANS = ("v_exp_f32", "v_log_f32", "v_rcp_f32", "v_rsq_f32", "v_sqrt_f32", "v_sin_f32", "v_cos_f32")
def _regs(tok):
    tok = tok.strip().lstrip("-")
    m = re.fullmatch(r"(?:abs\()?\|?([vsa])(\d+)\|?\)?", tok)
    if m: return [(m.group(1), int(m.group(2)))]
    m = re.fullmatch(r"([vsa])\[(\d+):(\d+)\]", tok)
    if m: return [(m.group(1), i) for i in range(int(m.group(2)), int(m.group(3))+1)]
    if tok == "vcc": return [("s", 106), ("s", 107)]
    if tok == "m0": return [("s", 124)]
    if tok == "exec": return [("s", 126), ("s", 127)]
    if tok in ("exec_lo",): return [("s", 126)]
    if tok in ("exec_hi",): return [("s", 127)]
    return []
def parse(line):
    line = line.split(";")[0].strip()
    if not line or line.endswith(":") or line.startswith("."): return None
    parts = line.split(None, 1)
    op = parts[0]; rest = parts[1] if len(parts) > 1 else ""
    ops = []; depth = 0; cur = ""
    for ch in rest:
        if ch == "[": depth += 1
        if ch == "]": depth -= 1
        if ch == "," and depth == 0: ops.append(cur.strip()); cur = ""
        else: cur += ch
    if cur.strip(): ops.append(cur.strip())
    mods = ""
    if ops:
        last = ops[-1].split(None, 1)
        if len(last) > 1: ops[-1] = last[0]; mods = last[1]
    return op, ops, mods
def classify(op, ops, mods):
    R = lambda i: _regs(ops[i]) if i < len(ops) else []
    d = dict(op=op, w=[], r=[], kind="other", passes=0, srcC=[], srcAB=[], dpp=("row_" in mods or "quad_perm" in mods or op.endswith("_dpp")), wide=False, lds=(" lds" in " " + mods))
    if op.startswith("v_mfma"):
        d["kind"] = "mfma"; d["w"] = R(0); d["srcAB"] = R(1) + R(2); d["srcC"] = R(3); d["r"] = d["srcAB"] + d["srcC"]
        d["passes"] = 8 if "32x32" in op else 4
    elif op.startswith("v_cmp"):
        d["kind"] = "valu"; d["w"] = R(0); d["r"] = sum((R(i) for i in range(1, len(ops))), [])
    elif op.startswith("v_readfirstlane") or op.startswith("v_readlane"):
        d["kind"] = "valu"; d["w"] = R(0); d["r"] = sum((R(i) for i in range(1, len(ops))), []); d["rl"] = True
    elif op.startswith("v_permlane"):
        d["kind"] = "valu"; d["w"] = R(0) + R(1); d["r"] = R(0) + R(1); d["perm"] = True
    elif op.startswith("v_"):
        d["kind"] = "valu"; d["w"] = R(0); d["r"] = sum((R(i) for i in range(1, len(ops))), [])
        if op.startswith(("v_fmac", "v_dot2c", "v_pk_fmac")) or "UNUSED_PRESERVE" in mods: d["r"] += R(0)
        if op.startswith(("v_add_co", "v_sub_co", "v_addc_co")): d["w"] += R(1)
        if d["dpp"]: d["r"] += R(0)
        if op.replace("_e32", "").replace("_e64", "") in TRANS: d["trans"] = True
    elif op.startswith(("buffer_load", "global_load")):
        d["kind"] = "vmem"
        if d["lds"]: d["r"] = sum((R(i) for i in range(len(ops))), []) + [("s", 124)]
        else: d["w"] = R(0); d["r"] = sum((R(i) for i in range(1, len(ops))), [])
    elif op.startswith(("buffer_store", "global_store", "buffer_atomic", "global_atomic")):
        d["kind"] = "vmem"; d["r"] = sum((R(i) for i in range(len(ops))), [])
        if op.endswith(("x3", "x4")):
            d["wide"] = True; d["data"] = R(0) if op.startswith("buffer") else R(1)
    elif op.startswith("ds_read") or op.startswith("ds_bperm") or op.startswith("ds_swiz"):
        d["kind"] = "ds"; d["w"] = R(0); d["r"] = sum((R(i) for i in range(1, len(ops))), [])
    elif op.startswith("ds_"):
        d["kind"] = "ds"; d["r"] = sum((R(i) for i in range(len(ops))), [])
    elif op.startswith("s_nop"):
        d["kind"] = "nop"; d["n"] = int(ops[0], 0) + 1
    elif op.startswith("s_"):
        d["kind"] = "salu"
        if op.startswith(("s_cmp", "s_waitcnt", "s_barrier", "s_cbranch", "s_branch", "s_setprio", "s_sleep", "s_endpgm", "s_bitcmp")):
            d["r"] = sum((R(i) for i in range(len(ops))), [])
        else:
            d["w"] = R(0); d["r"] = sum((R(i) for i in range(1, len(ops))), [])
            if "saveexec" in op: d["w"] += [("s", 126), ("s", 127)]
    return d
def check_hazards(lines, verbose=True):
    hist = []
    pos = 0; errs = []
    for ln in lines:
        p = parse(ln)
        if p is None: continue
        d = classify(*p)
        Rr = set(d["r"]); W = set(d["w"])
        for (q, e, t) in reversed(hist):
            dist = pos - q - 1 + 0
            if dist > 20: break
            need = 0
            ew = set(e["w"])
            if e["kind"] == "valu":
                vw = {x for x in ew if x[0] == "v"}; sw = {x for x in ew if x[0] == "s"}
                if d["kind"] == "mfma" and (vw & Rr): need = max(need, 2)
                if d["kind"] == "valu" and d["dpp"] and (vw & Rr): need = max(need, 2)
                if d.get("perm") and (vw & Rr): need = max(need, 2)
                if d.get("rl") and (vw & Rr): need = max(need, 1)
                if e.get("trans") and d["kind"] == "valu" and not d.get("trans") and (vw & Rr): need = max(need, 1)
                if d["kind"] == "valu" and (sw & Rr): need = max(need, 2)
                if d["kind"] == "valu" and d["op"].startswith(("v_cndmask", "v_addc")) and (sw & {("s",106),("s",107)}) and "vcc" in ln: need = max(need, 2)
                if d["kind"] == "vmem" and (sw & Rr): need = max(need, 5)
                if d["kind"] == "salu" and (sw & Rr): need = max(need, 1)
            if e["kind"] == "mfma":
                big = e["passes"] == 8
                if d["kind"] == "mfma":
                    if ew & set(d["srcAB"]): need = max(need, 12 if big else 8)
                    c = set(d["srcC"])
                    if (ew & c) and not (ew == c and e["passes"] == d["passes"]): need = max(need, 10 if big else 6)
                    if (ew & W) and not (ew == c and W == c) and not (ew & c): need = max(need, 0)
                elif d["kind"] in ("valu", "vmem", "ds"):
                    if ew & (Rr | W): need = max(need, 12 if big else 8)
                    if d["kind"] == "valu" and (set(e["srcC"]) & W): need = max(need, 7 if big else 3)
            if e["kind"] == "salu" and ("s", 124) in ew and d["kind"] == "vmem" and d["lds"]: need = max(need, 1)
            if e.get("wide") and d["kind"] == "valu" and (set(e["data"]) & W): need = max(need, 2)
            if e.get("wide") and d["kind"] in ("ds", "vmem") and (set(e["data"]) & W): need = max(need, 1)
            if need > dist:
                errs.append(f"hazard: need {need} have {dist}: [{t}] -> [{ln.strip()}]")
        hist.append((pos, d, ln.strip()))
        pos += d["n"] if d["kind"] == "nop" else 1
        if len(hist) > 40: hist.pop(0)
    if verbose:
        for e in errs[:50]: print(e)
    return errs

class VM:
    def __init__(self, a): self.a = a; self.q = []
    def issue(self, tag, n=1): self.q += [tag]*n
    def wait(self, tag):
        idx = max(i for i, t in enumerate(self.q) if t == tag)
        n = len(self.q) - 1 - idx
        assert n <= 63
        self.a(f"s_waitcnt vmcnt({n})")
        self.q = self.q[idx+1:]
    def waitall(self): self.a("s_waitcnt vmcnt(0)"); self.q = []
```

```python
from asmlib import *
from layout import *

def srd(a, d, base, size):
    a(f"s_mov_b32 s{d}, s{base}")
    a(f"s_and_b32 s{d+1}, s{base+1}, 0xffff")
    a(f"s_mov_b32 s{d+2}, {size}")
    a(f"s_mov_b32 s{d+3}, 0x20000")

def allreduce32(a, v, t):
    for ror in (8, 4, 2, 1):
        a.nop(2)
        a(f"v_add_f32_dpp v{v}, v{v}, v{v} row_ror:{ror} row_mask:0xf bank_mask:0xf")
    a(f"v_mov_b32 v{t}, v{v}")
    a.nop(2)
    a(f"v_permlane16_swap_b32 v{v}, v{t}")
    a(f"v_add_f32 v{v}, v{v}, v{t}")

def bf16r(a, v):
    a(f"v_cvt_pk_bf16_f32 v{v}, v{v}, v{v}")
    a(f"v_and_b32 v{v}, 0xffff0000, v{v}")

LDS_X = 65536
LDS_MISC = 131072
LDS_CS = LDS_MISC + 10240
LDS_ST = LDS_CS + 512
K1_LDS = LDS_ST + 1024


WS_STATS = 0
def gen_k1(name, diag=False, rot=False, pf=0, touch=0, dg2=False, sfirst=True, fl='atom', flat=3, tpos=0, hpos=2):
    a = Asm(); a.diag = diag
    sW, sMT, sNT = 3, 10, 11
    X, Wd, WS, DBG = 12, 16, 20, 44
    sXo, sWo, sMX, sMW = 24, 25, 26, 27
    sT0, sT1, sT2, sT3 = 28, 29, 30, 31
    sCol, sKS, sCnt, sWV = 32, 35, 36, 37
    vL = 1
    vXA = 2
    vWA = 6
    vXR = 10
    vWR = 14
    vWO = 18
    vSEL = 20
    vCS = 24
    vSQ = 32
    vF = 48
    vACC = 96
    vT = 160
    t0, t1, t2, t3 = vT+20, vT+21, vT+22, vT+23
    vI, vH = vT+24, vT+25
    s0, s1, s2_ = vT+50, vT+52, vT+54
    LDS_S8 = LDS_ST + 1024
    a.label(name)
    a(f"s_cmp_ge_u32 s2, 256")
    a(f"s_cbranch_scc1 {name}_end")
    a.stamp(0); a.stamp(8, True)
    a("s_load_dwordx4 s[4:7], s[0:1], 0")
    a("s_load_dwordx4 s[40:43], s[0:1], 72")
    a("v_lshrrev_b32 v2, 6, v0")
    a(f"v_and_b32 v{vL}, 63, v0")
    a(f"v_readfirstlane_b32 s{sWV}, v2")
    a(f"s_and_b32 s{sT0}, s2, 7")
    a(f"s_lshr_b32 s{sT1}, s2, 3")
    a(f"s_and_b32 s{sW}, s{sWV}, 3")
    a(f"s_and_b32 s{sT2}, s{sT0}, 3")
    a(f"s_lshl_b32 s{sT2}, s{sT2}, 2")
    a(f"s_and_b32 s{sT3}, s{sT1}, 3")
    a(f"s_add_u32 s{sMT}, s{sT2}, s{sT3}")
    a(f"s_lshr_b32 s{sT0}, s{sT0}, 2")
    a(f"s_lshl_b32 s{sT0}, s{sT0}, 3")
    a(f"s_lshr_b32 s{sT1}, s{sT1}, 2")
    a(f"s_add_u32 s{sNT}, s{sT0}, s{sT1}")
    a(f"s_lshl_b32 s{sMX}, s{sW}, 14")
    a(f"s_add_u32 s{sMX}, s{sMX}, {LDS_X}")
    a(f"v_and_b32 v{vI}, 31, v{vL}")
    a(f"v_lshrrev_b32 v{vH}, 5, v{vL}")
    a(f"s_cmp_lt_u32 s{sWV}, 4")
    a(f"s_cbranch_scc1 {name}_C")
    if rot:
        a(f"s_mul_i32 s{sKS}, s{sT3}, 3")
        a(f"s_add_u32 s{sKS}, s{sKS}, s{sT1}")
        a(f"s_sub_u32 s{sT2}, s{sKS}, 10")
        a(f"s_cmp_ge_u32 s{sKS}, 10")
        a(f"s_cselect_b32 s{sKS}, s{sT2}, s{sKS}")
    a(f"s_mul_i32 s{sT0}, s{sNT}, 240")
    a(f"s_lshl_b32 s{sT1}, s{sNT}, 8")
    a(f"s_add_u32 s{sT1}, s{sT1}, {2560 - 11*256}")
    a(f"s_cmp_lt_u32 s{sNT}, 11")
    a(f"s_cselect_b32 s{sCol}, s{sT0}, s{sT1}")
    a(f"s_lshl_b32 s{sT0}, s{sMT}, 7")
    a(f"s_lshl_b32 s{sT2}, s{sW}, 5")
    a(f"s_add_u32 s{sT0}, s{sT0}, s{sT2}")
    a(f"s_mul_i32 s{sXo}, s{sT0}, 1280")
    sSTo = 38
    a(f"s_lshl_b32 s{sSTo}, s{sT0}, 3")
    a(f"s_mul_i32 s{sWo}, s{sW}, {16*3840}")
    a(f"s_add_u32 s{sWo}, s{sWo}, s{sCol}")
    if rot:
        a(f"s_lshl_b32 s{sT2}, s{sKS}, 7")
        a(f"s_add_u32 s{sXo}, s{sXo}, s{sT2}")
        a(f"s_mul_i32 s{sT2}, s{sKS}, {64*3840}")
        a(f"s_add_u32 s{sWo}, s{sWo}, s{sT2}")
    a(f"s_lshl_b32 s{sMW}, s{sW}, 12")
    a(f"v_lshrrev_b32 v{t0}, 3, v{vL}")
    a(f"v_lshrrev_b32 v{t1}, 4, v{vL}")
    a(f"v_and_b32 v{t2}, 7, v{vL}")
    a(f"v_mul_u32_u24 v{t0}, 1280, v{t0}")
    for j in range(4):
        a(f"v_xor_b32 v{t3}, v{t2}, v{t1}")
        if j % 2: a(f"v_xor_b32 v{t3}, 4, v{t3}")
        a(f"v_lshl_add_u32 v{vXA+j}, v{t3}, 4, v{t0}")
        if j: a(f"v_add_u32 v{vXA+j}, {8*j*1280}, v{vXA+j}")
    a(f"v_and_b32 v{t2}, 15, v{vL}")
    a(f"v_lshlrev_b32 v{t3}, 2, v{t1}")
    a(f"v_xor_b32 v{t2}, v{t2}, v{t3}")
    a(f"v_mul_u32_u24 v{t0}, 3840, v{t1}")
    a(f"v_lshl_add_u32 v{vWA}, v{t2}, 4, v{t0}")
    for j in range(1, 4):
        a(f"v_add_u32 v{vWA+j}, {4*j*3840}, v{vWA}")
    a("s_waitcnt lgkmcnt(0)")
    if not dg2: a.stamp(1)
    srd(a, X, 4, 2048*640*2)
    srd(a, Wd, 6, 640*1920*2)
    vm = VM(a)
    def dma(stage):
        buf = stage % 4
        for j in range(4):
            a(f"s_add_u32 m0, s{sMW}, {buf*16384 + j*1024}\ns_nop 0\nbuffer_load_dwordx4 v{vWA+j}, {sr(Wd,4)}, s{sWo} offen lds")
            a(f"s_add_u32 m0, s{sMX}, {buf*4096 + j*1024}\ns_nop 0\nbuffer_load_dwordx4 v{vXA+j}, {sr(X,4)}, s{sXo} offen lds")
        a(f"s_add_u32 s{sXo}, s{sXo}, 128\ns_add_u32 s{sWo}, s{sWo}, {64*3840}")
        if rot:
            a(f"s_add_u32 s{sKS}, s{sKS}, 1")
            a(f"s_cmp_eq_u32 s{sKS}, 10")
            a(f"s_cselect_b32 s{sT0}, 1280, 0")
            a(f"s_cselect_b32 s{sT1}, {640*3840}, 0")
            a(f"s_sub_u32 s{sXo}, s{sXo}, s{sT0}")
            a(f"s_sub_u32 s{sWo}, s{sWo}, s{sT1}")
        vm.issue(stage, 8)
    if touch == 3:
        TS = 52; sTo = 56; vTo = vT + 60
        a(f"s_lshr_b32 s{sT0}, s2, 3")
        a(f"s_cmp_lt_u32 s{sT0}, 8")
        for k in range(3): a(f"s_cselect_b32 s{TS+k}, s{X+k}, s{Wd+k}")
        a(f"s_mov_b32 s{TS+3}, 0x20000")
        a(f"s_movk_i32 s57, 128")
        a(f"s_cselect_b32 s57, s57, {64*3840}")
        a(f"s_cselect_b64 vcc, -1, 0")
        a(f"s_and_b32 s{sT1}, s2, 3")
        a(f"s_lshl_b32 s{sT1}, s{sT1}, 3")
        a(f"s_add_u32 s{sT1}, s{sT1}, s{sT0}")
        a(f"s_mul_i32 s{sT1}, s{sT1}, {64*1280}")
        a(f"s_sub_u32 s{sT2}, s{sT0}, 8")
        a(f"s_mul_i32 s{sT2}, s{sT2}, {4*3840}")
        a(f"s_bfe_u32 s{sT3}, s2, 0x10002")
        a(f"s_mul_i32 s{sT3}, s{sT3}, 1920")
        a(f"s_add_u32 s{sT2}, s{sT2}, s{sT3}")
        a(f"s_cmp_lt_u32 s{sT0}, 24")
        a(f"s_cselect_b32 s{sT2}, s{sT2}, 0x10000000")
        a(f"s_cmp_lt_u32 s{sT0}, 8")
        a(f"s_cselect_b32 s{sTo}, s{sT1}, s{sT2}")
        a(f"s_add_u32 s{sT0}, s{sW}, 2")
        a(f"s_mul_i32 s{sT0}, s{sT0}, s57")
        a(f"s_add_u32 s{sTo}, s{sTo}, s{sT0}")
        a(f"s_lshl_b32 s57, s57, 2")
        a(f"v_mul_u32_u24 v{vTo}, 1280, v{vL}")
        a(f"v_and_b32 v{vTo+1}, 15, v{vL}")
        a(f"v_lshlrev_b32 v{vTo+1}, 7, v{vTo+1}")
        a(f"v_add_u32 v{vTo+1}, v{vTo+1}, v{t0}")
        a(f"v_cndmask_b32 v{vTo}, v{vTo+1}, v{vTo}, vcc")
        def tch(k):
            a(f"buffer_load_dword v{vTo+2+k}, v{vTo}, {sr(TS,4)}, s{sTo} offen")
            a(f"s_add_u32 s{sTo}, s{sTo}, s57")
            vm.issue("t", 1)
    dma(0)
    if touch == 3 and tpos == 0: tch(0)
    dma(1)
    if touch == 3 and tpos == 1: tch(0)
    if not dg2: a.stamp(2)
    srd(a, WS, 42, WS_SIZE)
    srd(a, DBG, 40, 256)
    E = vT + 30
    a(f"v_bfe_u32 v{t0}, v{vL}, 2, 2")
    a(f"v_mul_u32_u24 v{t0}, 1280, v{t0}")
    a(f"v_lshrrev_b32 v{t1}, 4, v{vL}")
    a(f"v_lshl_add_u32 v{t0}, v{t1}, 5, v{t0}")
    a(f"v_and_b32 v{t1}, 3, v{vL}")
    a(f"v_lshl_add_u32 v{t0}, v{t1}, 3, v{t0}")
    a(f"s_lshl_b32 s{sT0}, s{sW}, 7")
    a(f"s_add_u32 s{sT0}, s{sT0}, {LDS_MISC}")
    a(f"v_add_u32 v{t0}, s{sT0}, v{t0}")
    a(f"s_cmp_lt_u32 s{sW}, 2")
    a(f"s_cselect_b32 s{sT3}, 8, 4")
    a(f"s_lshl_b32 s{sT0}, s{sT3}, 7")
    a(f"v_add_u32 v{t1}, s{sT0}, v{t0}")
    a(f"v_lshlrev_b32 v{t2}, 17, v{vH}")
    a(f"v_lshl_add_u32 v{t2}, v{vI}, 4, v{t2}")
    a(f"v_lshlrev_b32 v{t3}, 3, v{vL}")
    sG8, sH0, sH1, sH2 = 33, 34, 39, 48
    a(f"s_lshl_b32 s{sG8}, s{sMT}, 4")
    a(f"s_add_u32 s{sG8}, s{sG8}, s{sNT}")
    a(f"s_lshl_b32 s{sH0}, s{sG8}, 9")
    a(f"s_lshl_b32 s{sT1}, s{sW}, 18")
    a(f"s_add_u32 s{sH0}, s{sH0}, s{sT1}")
    a(f"s_add_u32 s{sH0}, s{sH0}, {WS_HT}")
    a(f"s_add_u32 s{sH1}, s{sH0}, {4<<18}")
    a(f"s_lshl_b32 s{sH2}, s{sT3}, 18")
    a(f"s_add_u32 s{sH2}, s{sH2}, s{sH0}")
    vm.wait(0)
    a("s_barrier")
    if dg2: a.stamp(1)
    if not dg2: a.stamp(3)
    a(f"ds_read_b64_tr_b16 {vr(E,2)}, v{t0}")
    a(f"ds_read_b64_tr_b16 {vr(E+2,2)}, v{t0} offset:5120")
    a(f"ds_read_b64_tr_b16 {vr(E+4,2)}, v{t0} offset:512")
    a(f"ds_read_b64_tr_b16 {vr(E+6,2)}, v{t0} offset:{512+5120}")
    a(f"ds_read_b64_tr_b16 {vr(E+8,2)}, v{t1}")
    a(f"ds_read_b64_tr_b16 {vr(E+10,2)}, v{t1} offset:5120")
    a(f"v_add_u32 v{E+14}, {LDS_S8}, v{t3}")
    a(f"ds_read_b64 {vr(E+12,2)}, v{E+14}")
    if touch == 3: tch(1)
    dma(2)
    a(f"s_lshl_b32 s{sT2}, s{sG8}, 6")
    a(f"s_cmp_eq_u32 s{sW}, 0")
    a(f"s_cselect_b32 s{sT2}, s{sT2}, {WS_SIZE}")
    vm.wait(1)
    a("s_waitcnt lgkmcnt(0)")
    a("s_barrier")
    if dg2: a.stamp(2)
    a("s_mov_b64 exec, 0xff")
    a(f"buffer_store_dwordx2 {vr(E+12,2)}, v{t3}, {sr(WS,4)}, s{sT2} offen sc1")
    a("s_mov_b64 exec, -1")
    vm.issue("st", 1)
    def flag():
        a(f"v_mov_b32 v{E+16}, 1")
        a(f"s_cmp_eq_u32 s{sW}, 0")
        if fl == "byte":
            a(f"s_cselect_b32 s{sT2}, s{sG8}, 256")
        else:
            a(f"s_lshl_b32 s{sT0}, s{sMT}, 4")
            a(f"s_cselect_b32 s{sT2}, s{sT0}, 256")
            a.lines[-2], a.lines[-3] = a.lines[-3], a.lines[-2]
        a("s_mov_b64 exec, 1")
        if fl == "byte": a(f"buffer_store_byte v{E+16}, v{E+17}, {sr(DBG,4)}, s{sT2} offen sc1")
        else: a(f"buffer_atomic_add v{E+16}, v{E+17}, {sr(DBG,4)}, s{sT2} offen sc1")
        a("s_mov_b64 exec, -1")
        vm.issue("fl", 1)
    a(f"v_mov_b32 v{E+17}, 0")
    for s in range(2, 9):
        dma(s+1)
        if s == hpos:
            a(f"buffer_store_dwordx4 {vr(E,4)}, v{t2}, {sr(WS,4)}, s{sH0} offen")
            a(f"buffer_store_dwordx4 {vr(E+4,4)}, v{t2}, {sr(WS,4)}, s{sH1} offen")
            a(f"buffer_store_dwordx4 {vr(E+8,4)}, v{t2}, {sr(WS,4)}, s{sH2} offen")
            vm.issue("h", 3)
        if s == 8:
            a(f"s_lshl_b32 s{sT0}, s2, 9")
            a(f"s_lshl_b32 s{sT1}, s{sW}, 7")
            a(f"s_add_u32 s{sT0}, s{sT0}, s{sT1}")
            a(f"s_add_u32 s{sT0}, s{sT0}, {WS_FLG}")
            a(f"v_lshlrev_b32 v{t0}, 2, v{vI}")
            a(f"buffer_store_dword v{E+17}, v{t0}, {sr(WS,4)}, s{sT0} offen")
            vm.issue("z", 1)
            a(f"s_lshl_b32 s{sT2}, s{sMT}, 4")
            a(f"s_mov_b32 s{sT3}, {0x01010101 if fl == 'byte' else 16}")
            a(f"buffer_load_dwordx4 {vr(E+20,4)}, v{E+17}, {sr(DBG,4)}, s{sT2} offen sc1")
            vm.issue("p", 1)
        vm.wait(s)
        if s == flat: flag()
        a("s_barrier")
        if dg2 and s in (2, 3, 4, 6): a.stamp({2: 3, 3: 4, 4: 5, 6: 6}[s])
    if not dg2: a.stamp(4)
    a(f"s_mov_b32 s{sCnt}, 0x40000")
    a.label(f"{name}_PL")
    a("s_waitcnt vmcnt(0)")
    if fl == "byte":
        a(f"v_and_b32 v{E+20}, v{E+20}, v{E+21}")
        a(f"v_and_b32 v{E+22}, v{E+22}, v{E+23}")
        a(f"v_and_b32 v{E+20}, v{E+20}, v{E+22}")
    a(f"s_sub_u32 s{sCnt}, s{sCnt}, 1")
    a(f"v_readfirstlane_b32 s{sT0}, v{E+20}")
    a(f"s_cbranch_scc1 {name}_PX")
    a(f"s_cmp_eq_u32 s{sT0}, s{sT3}")
    a(f"s_cbranch_scc1 {name}_PX")
    a("s_sleep 2")
    a(f"buffer_load_dwordx4 {vr(E+20,4)}, v{E+17}, {sr(DBG,4)}, s{sT2} offen sc1")
    a(f"s_branch {name}_PL")
    a.label(f"{name}_PX")
    a(f"v_lshlrev_b32 v{t3}, 3, v{vI}")
    a(f"buffer_load_dwordx2 {vr(E+8,2)}, v{t3}, {sr(WS,4)}, s{sSTo} offen sc1")
    if not dg2: a.stamp(5)
    a("s_barrier")
    if dg2: a.stamp(7)
    a(f"s_lshl_b32 s{sT0}, s{sW}, 8")
    a(f"s_add_u32 s{sT0}, s{sT0}, {LDS_ST}")
    a(f"v_lshl_add_u32 v{t0}, v{vI}, 2, s{sT0}")
    a("s_waitcnt vmcnt(0)")
    a(f"ds_write2_b32 v{t0}, v{E+8}, v{E+9} offset0:0 offset1:32")
    a("s_waitcnt lgkmcnt(0)")
    if not dg2: a.stamp(6)
    a("s_barrier")
    if not dg2: a.stamp(7)
    a.stamp(9, True)
    a.dump_stamps(10, WS, sWV, WS_DIAG)
    a("s_endpgm")
    a.label(f"{name}_C")
    vS = vT + 4
    a(f"v_mul_u32_u24 v{vT+1}, 1280, v{vH}")
    a(f"v_lshl_add_u32 v{vT}, v{vI}, 3, v{vT+1}")
    a(f"s_lshl_b32 s{sT0}, s{sMT}, 7")
    a(f"s_lshl_b32 s{sT1}, s{sNT}, 3")
    a(f"s_add_u32 s{sT1}, s{sT1}, s{sT0}")
    a(f"s_lshl_b32 s{sT2}, s{sW}, 1")
    a(f"s_add_u32 s{sT1}, s{sT1}, s{sT2}")
    a(f"s_mul_i32 s{sT1}, s{sT1}, 1280")
    a("s_waitcnt lgkmcnt(0)")
    a.stamp(1)
    srd(a, X, 4, 2048*640*2)
    for i in range(5):
        a(f"buffer_load_dwordx2 {vr(vS+2*i,2)}, v{vT}, {sr(X,4)}, s{sT1} offen offset:{256*i}")
    NT = 0
    if touch in (1, 2):
        srd(a, Wd, 6, 640*1920*2)
        a(f"s_lshr_b32 s{sT0}, s2, 3")
        a(f"s_lshl_b32 s{sT0}, s{sT0}, 2")
        a(f"s_add_u32 s{sT0}, s{sT0}, s{sW}")
        a(f"s_lshl_b32 s{sT0}, s{sT0}, 2")
        a(f"s_add_u32 s{sT1}, s{sT0}, 128")
        a(f"s_mul_i32 s{sT1}, s{sT1}, 3840")
        a(f"s_bfe_u32 s{sT2}, s2, 0x10002")
        a(f"s_mul_i32 s{sT2}, s{sT2}, 1920")
        a(f"s_add_u32 s{sT1}, s{sT1}, s{sT2}")
        a(f"s_and_b32 s{sT2}, s2, 3")
        a(f"s_lshl_b32 s{sT2}, s{sT2}, 9")
        a(f"s_add_u32 s{sT0}, s{sT0}, s{sT2}")
        a(f"s_mul_i32 s{sT0}, s{sT0}, 1280")
        a(f"v_lshrrev_b32 v{t0}, 4, v{vL}")
        a(f"v_and_b32 v{t1}, 15, v{vL}")
        a(f"v_lshlrev_b32 v{t1}, 7, v{t1}")
        a(f"v_mul_u32_u24 v{t2}, 3840, v{t0}")
        a(f"v_add_u32 v{t2}, v{t2}, v{t1}")
        a(f"v_mul_u32_u24 v{t0}, 1280, v{t0}")
        a(f"v_add_u32 v{t0}, v{t0}, v{t1}")
        a(f"v_mov_b32 v{vSQ+2}, v{t2}")
        a(f"v_mov_b32 v{vSQ+3}, v{t0}")
        a(f"s_mov_b32 s50, s{sT1}")
        a(f"s_mov_b32 s51, s{sT0}")
        if touch == 1:
            a(f"buffer_load_dword v{vSQ}, v{vSQ+2}, {sr(Wd,4)}, s50 offen")
            a(f"buffer_load_dword v{vSQ+1}, v{vSQ+3}, {sr(X,4)}, s51 offen")
            NT = 2
    srd(a, WS, 42, WS_SIZE)
    a(f"v_bfe_u32 v{t0}, v{vL}, 1, 3")
    a(f"v_xor_b32 v{t0}, v{t0}, v{vH}")
    a(f"v_lshlrev_b32 v{t1}, 7, v{vI}")
    a(f"v_add_u32 v{t1}, s{sMX}, v{t1}")
    for t in range(4):
        a(f"v_xor_b32 v{t2}, {2*t}, v{t0}")
        a(f"v_lshl_add_u32 v{vXR+t}, v{t2}, 4, v{t1}")
    a(f"v_bfe_u32 v{t0}, v{vL}, 2, 2")
    a(f"v_lshl_add_u32 v{t1}, v{vH}, 3, v{t0}")
    a(f"v_lshlrev_b32 v{t1}, 8, v{t1}")
    a(f"v_bfe_u32 v{t2}, v{vL}, 4, 1")
    a(f"v_lshl_add_u32 v{t1}, v{t2}, 5, v{t1}")
    a(f"v_and_b32 v{t2}, 3, v{vL}")
    a(f"v_lshl_add_u32 v{t1}, v{t2}, 3, v{t1}")
    for b in range(4):
        a(f"v_xor_b32 v{t2}, {b}, v{t0}")
        a(f"v_lshl_add_u32 v{vWR+b}, v{t2}, 6, v{t1}")
    a(f"v_xor_b32 v{t2}, s{sW}, v{t0}")
    a(f"v_lshl_add_u32 v{vWO}, v{t2}, 6, v{t1}")
    a(f"v_and_b32 v{t0}, 7, v{vL}")
    a(f"v_bfe_u32 v{t1}, v{vL}, 4, 1")
    a(f"v_cmp_eq_u32 vcc, v{t0}, v{t1}")
    a(f"v_mov_b32 v{t2}, 0x3f803f80")
    for i in range(4): a(f"v_mov_b32 v{vCS+i}, 0")
    a(f"v_cndmask_b32 v{vSEL}, 0, v{t2}, vcc")
    for i in range(1, 4): a(f"v_mov_b32 v{vSEL+i}, v{vSEL}")
    for b in range(4): a(f"v_mfma_f32_32x32x16_bf16 {vr(vACC+16*b,16)}, {vr(vCS,4)}, {vr(vCS,4)}, 0")
    a(f"s_mul_i32 s{sT0}, s{sW}, 2560")
    a(f"s_add_u32 s{sT0}, s{sT0}, {LDS_MISC}")
    a(f"v_add_u32 v{t0}, s{sT0}, v{vT}")
    a(f"s_lshl_b32 s{sT0}, s{sW}, 4")
    a(f"s_add_u32 s{sT0}, s{sT0}, {LDS_S8}")
    a(f"v_lshl_add_u32 v{t1}, v{vH}, 3, s{sT0}")
    a(f"s_mov_b32 s{sT3}, 0x3000")
    E = vT + 30
    a(f"s_waitcnt vmcnt({NT})")
    if touch == 2:
        a(f"buffer_load_dword v{vSQ}, v{vSQ+2}, {sr(Wd,4)}, s50 offen")
        a(f"buffer_load_dword v{vSQ+1}, v{vSQ+3}, {sr(X,4)}, s51 offen")
    a.stamp(2)
    for i in range(10):
        a(f"v_lshlrev_b32 v{E+2*i}, 16, v{vS+i}")
        a(f"v_and_b32 v{E+2*i+1}, 0xffff0000, v{vS+i}")
    a(f"v_pk_add_f32 {vr(s0,2)}, {vr(E,2)}, {vr(E+2,2)}")
    a(f"v_pk_add_f32 {vr(s1,2)}, {vr(E+4,2)}, {vr(E+6,2)}")
    for i in range(8, 20, 4):
        a(f"v_pk_add_f32 {vr(s0,2)}, {vr(s0,2)}, {vr(E+i,2)}")
        a(f"v_pk_add_f32 {vr(s1,2)}, {vr(s1,2)}, {vr(E+i+2,2)}")
    a(f"v_pk_add_f32 {vr(s0,2)}, {vr(s0,2)}, {vr(s1,2)}")
    a(f"v_add_f32 v{s0}, v{s0}, v{s0+1}")
    allreduce32(a, s0, s1)
    a(f"v_mul_f32 v{s0}, {hexf(1/640)}, v{s0}")
    a(f"v_mov_b32 v{s0+1}, v{s0}")
    for i in range(0, 20, 2):
        a(f"v_pk_add_f32 {vr(E+i,2)}, {vr(E+i,2)}, {vr(s0,2)} neg_lo:[0,1] neg_hi:[0,1]")
    a(f"v_pk_mul_f32 {vr(s1,2)}, {vr(E,2)}, {vr(E,2)}")
    a(f"v_pk_mul_f32 {vr(s2_,2)}, {vr(E+2,2)}, {vr(E+2,2)}")
    for i in range(4, 20, 4):
        a(f"v_pk_fma_f32 {vr(s1,2)}, {vr(E+i,2)}, {vr(E+i,2)}, {vr(s1,2)}")
        a(f"v_pk_fma_f32 {vr(s2_,2)}, {vr(E+i+2,2)}, {vr(E+i+2,2)}, {vr(s2_,2)}")
    a(f"v_pk_add_f32 {vr(s1,2)}, {vr(s1,2)}, {vr(s2_,2)}")
    a(f"v_add_f32 v{s1}, v{s1}, v{s1+1}")
    allreduce32(a, s1, s2_)
    mB, rB, var, dm = vT+56, vT+57, vT+58, vT+59
    a(f"v_mul_f32 v{var}, {hexf(1/640)}, v{s1}")
    a(f"v_cvt_pk_bf16_f32 v{rB}, v{s0}, v{var}")
    a(f"v_lshlrev_b32 v{mB}, 16, v{rB}")
    a(f"v_and_b32 v{rB}, 0xffff0000, v{rB}")
    a(f"v_add_f32 v{rB}, {hexf(1e-5)}, v{rB}")
    bf16r(a, rB)
    a(f"v_sqrt_f32 v{rB}, v{rB}")
    a(f"v_sub_f32 v{dm}, v{s0}, v{mB}")
    bf16r(a, rB)
    a(f"v_rcp_f32 v{rB}, v{rB}")
    a.nop(1)
    a(f"v_mul_f32 v{dm}, v{dm}, v{rB}")
    a(f"v_mul_f32 v{var}, v{var}, v{rB}")
    a(f"v_mul_f32 v{var}, v{var}, v{rB}")
    a(f"v_cvt_pk_bf16_f32 v{s1}, v{dm}, v{var}")
    a(f"v_lshlrev_b32 v{s0}, 16, v{s1}")
    a(f"v_and_b32 v{s1}, 0xffff0000, v{s1}")
    a(f"v_add_f32 v{s1}, {hexf(1e-5)}, v{s1}")
    bf16r(a, s1)
    a(f"v_sqrt_f32 v{s1}, v{s1}")
    a(f"v_sub_f32 v{dm}, v{dm}, v{s0}")
    bf16r(a, s1)
    a(f"v_rcp_f32 v{s1}, v{s1}")
    a(f"ds_write_b64 v{t1}, {vr(mB,2)}")
    a(f"v_mul_f32 v{s0}, v{dm}, v{s1}")
    a(f"v_mul_f32 v{s1}, v{s1}, v{rB}")
    a(f"v_mov_b32 v{s0+1}, v{s0}")
    a(f"v_mov_b32 v{s1+1}, v{s1}")
    for i in range(0, 20, 2):
        a(f"v_pk_fma_f32 {vr(E+i,2)}, {vr(E+i,2)}, {vr(s1,2)}, {vr(s0,2)}")
    for i in range(10):
        a(f"v_cvt_pk_bf16_f32 v{vS+i}, v{E+2*i}, v{E+2*i+1}")
    for i in range(5):
        a(f"ds_write_b64 v{t0}, {vr(vS+2*i,2)} offset:{256*i}")
    a("s_waitcnt lgkmcnt(0)")
    a(f"s_cmp_ge_u32 s{sNT}, 11")
    a(f"s_cbranch_scc1 {name}_V")

    def reads(t, fs):
        F = vF + 24*fs
        L = [f"ds_read_b128 {vr(F,4)}, v{vXR+t}"]
        for b in range(4):
            for h in range(2):
                L.append(f"ds_read_b64_tr_b16 {vr(F+4+4*b+2*h,2)}, v{vWR+b} offset:{t*4096+h*1024}")
        for h in range(2):
            L.append(f"ds_read_b64_tr_b16 {vr(F+20+2*h,2)}, v{vWO} offset:{t*4096+h*1024}")
        return L
    def advance():
        L = []
        for t in range(4):
            L.append(f"v_add_u32 v{t0}, 0x1000, v{vXR+t}\nv_bfi_b32 v{vXR+t}, s{sT3}, v{t0}, v{vXR+t}")
        for r in list(range(vWR, vWR+4)) + [vWO]:
            L.append(f"v_add_u32 v{r}, 0x4000, v{r}\nv_and_b32 v{r}, 0xffff, v{r}")
        return L
    def mfmas(fs, isV):
        F = vF + 24*fs
        L = []
        for b in range(4):
            A, B = (vr(F,4), vr(F+4+4*b,4)) if isV else (vr(F+4+4*b,4), vr(F,4))
            L.append(f"v_mfma_f32_32x32x16_bf16 {vr(vACC+16*b,16)}, {A}, {B}, {vr(vACC+16*b,16)}")
        sm = f"v_mfma_f32_16x16x32_bf16 {vr(vCS,4)}, {vr(vSEL,4)}, {vr(F+20,4)}, {vr(vCS,4)}"
        return [sm] + L if sfirst else L + [sm]
    def interleave(ms, others, per):
        idx = 0
        for i, m in enumerate(ms):
            a(m)
            for _ in range(per[i]):
                if idx < len(others): a(others[idx]); idx += 1
        assert idx == len(others)
    def mainloop(isV):
        lab = f"{name}_L{'V' if isV else 'Q'}"
        a.stamp(3)
        a("s_barrier")
        a.stamp(4)
        for x in reads(0, 0): a(x)
        a(f"s_mov_b32 s{sCnt}, 9")
        a(".p2align 3")
        a.label(lab)
        for t in range(4):
            fs = t % 2
            a("s_waitcnt lgkmcnt(0)")
            if t < 3:
                oth = reads(t+1, 1-fs)
                if t == 2: interleave(mfmas(fs, isV), oth + advance(), ((2, 4, 4, 5, 5) if sfirst else (4, 4, 4, 4, 4)))
                else: interleave(mfmas(fs, isV), oth, ((2, 4, 4, 1, 0) if sfirst else (4, 4, 3, 0, 0)))
            else:
                a(f"s_cmp_eq_u32 s{sCnt}, 0")
                a(f"s_cbranch_scc1 {lab}_x")
                a("s_barrier")
                a(f"s_sub_u32 s{sCnt}, s{sCnt}, 1")
                interleave(mfmas(fs, isV), reads(0, 1-fs), ((2, 4, 4, 1, 0) if sfirst else (4, 4, 3, 0, 0)))
                a(f"s_branch {lab}")
        a.label(f"{lab}_x")
        for m in mfmas(1, isV): a(m)
        a.stamp(5)
    def cswrite():
        a(f"s_lshl_b32 s{sT0}, s{sW}, 7")
        a(f"s_add_u32 s{sT0}, s{sT0}, {LDS_CS}")
        a(f"v_lshl_add_u32 v{t0}, v{vL}, 2, s{sT0}")
    def cswrite2():
        a("s_mov_b64 exec, 0xffff")
        a(f"ds_write2_b32 v{t0}, v{vCS}, v{vCS+1} offset0:0 offset1:16")
        a("s_mov_b64 exec, -1")
        a("s_waitcnt vmcnt(0) lgkmcnt(0)")
        a("s_barrier")
    mainloop(False)
    cswrite()
    def csreg(rho): return (vF + 4*rho) if rho < 12 else (vSQ + 4*(rho-12))
    vA16, vBq, vBk, vNk = vT, vT+1, vT+2, vT+4
    a(f"v_lshlrev_b32 v{vA16}, 4, v{vL}")
    a(f"v_lshlrev_b32 v{t1}, 3, v{vI}")
    a(f"v_lshl_add_u32 v{vBq}, v{vH}, 15, v{t1}")
    a(f"v_mul_u32_u24 v{t2}, {64*KVT}, v{vH}")
    a(f"v_add_u32 v{vBk}, v{t2}, v{t1}")
    a(f"v_lshlrev_b32 v{vNk}, 8, v{vH}")
    a(f"s_lshl_b32 s{sT0}, s{sW}, 8")
    a(f"s_add_u32 s{sT0}, s{sT0}, {LDS_ST}")
    a(f"v_lshl_add_u32 v{t1}, v{vI}, 2, s{sT0}")
    a(f"v_lshlrev_b32 v{t2}, 4, v{vH}")
    a(f"v_add_u32 v{t2}, {LDS_CS}, v{t2}")
    cswrite2()
    a.stamp(6)
    m, r = vT+50, vT+51
    a(f"ds_read2_b32 {vr(m,2)}, v{t1} offset0:0 offset1:32")
    for rho in range(15):
        a(f"ds_read_b128 {vr(csreg(rho),4)}, v{t2} offset:{rho*32}")
    sG, sQT = 33, 34
    a(f"s_mul_i32 s{sG}, s{sNT}, 6")
    a(f"s_lshl_b32 s{sQT}, s{sMT}, 2")
    a(f"s_add_u32 s{sQT}, s{sQT}, s{sW}")
    rq = vT + 5
    mm = vT + 6
    a("s_waitcnt lgkmcnt(15)")
    a(f"v_mul_f32 v{rq}, {hexf(QSCALE)}, v{r}")
    a(f"v_mov_b32 v{mm}, v{m}")
    a(f"v_mov_b32 v{mm+1}, v{m}")
    rr = vT + 8
    P = vT + 12
    n0, n1, n2 = vT+24+2, vT+24+4, vT+24+6
    for p in range(3):
        r0 = 5*p
        end = f"{name}_p{p}e"
        a(f"s_add_u32 s{sT0}, s{sG}, {2*p}")
        if p == 2:
            a(f"s_cmp_ge_u32 s{sT0}, 64")
            a(f"s_cbranch_scc1 {end}")
        a(f"s_waitcnt lgkmcnt({10-5*p})")
        for rho in range(r0, r0+5):
            for hh in range(2):
                A = vACC + 4*rho + 2*hh
                a(f"v_pk_fma_f32 {vr(A,2)}, {vr(mm,2)}, {vr(csreg(rho)+2*hh,2)}, {vr(A,2)} neg_lo:[1,0,0] neg_hi:[1,0,0]")
        def ss(dst, rhos):
            first = True
            for rho in rhos:
                for hh in range(2):
                    A = vACC + 4*rho + 2*hh
                    if first: a(f"v_pk_mul_f32 {vr(dst,2)}, {vr(A,2)}, {vr(A,2)}"); first = False
                    else: a(f"v_pk_fma_f32 {vr(dst,2)}, {vr(A,2)}, {vr(A,2)}, {vr(dst,2)}")
        ss(n0, (r0, r0+1)); ss(n1, (r0+3, r0+4)); ss(n2, (r0+2,))
        a(f"v_add_f32 v{n0}, v{n0}, v{n0+1}")
        a(f"v_add_f32 v{n1}, v{n1}, v{n1+1}")
        a(f"v_add_f32 v{n2}, v{n2}, v{n2+1}")
        a(f"s_cmp_lt_u32 s{sT0}, 32")
        a(f"s_cselect_b64 vcc, -1, 0")
        a(f"v_permlane32_swap_b32 v{n0}, v{n1}")
        a(f"v_cndmask_b32 v{rr}, v{r}, v{rq}, vcc")
        a(f"v_cndmask_b32 v{rr+1}, v{r}, v{rq}, vcc")
        a(f"v_add_f32 v{n0}, v{n0}, v{n1}")
        a(f"v_add_f32 v{n0}, v{n0}, v{n2}")
        a(f"v_sqrt_f32 v{n0}, v{n0}")
        for k in range(10):
            A = vACC + 4*r0 + 2*k
            a(f"v_pk_mul_f32 {vr(A,2)}, {vr(A,2)}, {vr(rr,2)}")
        a(f"v_mul_f32 v{n0}, v{n0}, v{rr}")
        for k in range(4): a(f"v_cvt_pk_bf16_f32 v{P+k}, v{vACC+4*r0+2*k}, v{vACC+4*r0+2*k+1}")
        for k in range(4): a(f"v_cvt_pk_bf16_f32 v{P+4+k}, v{vACC+4*(r0+3)+2*k}, v{vACC+4*(r0+3)+2*k+1}")
        for k in range(2): a(f"v_cvt_pk_bf16_f32 v{P+8+k}, v{vACC+4*(r0+2)+2*k}, v{vACC+4*(r0+2)+2*k+1}")
        a(f"s_cbranch_scc0 {name}_p{p}k")
        a(f"s_lshl_b32 s{sT1}, s{sT0}, 6")
        a(f"s_add_u32 s{sT1}, s{sT1}, s{sQT}")
        a(f"s_lshl_b32 s{sT2}, s{sT1}, 10")
        a(f"s_add_u32 s{sT2}, s{sT2}, {WS_QA}")
        a(f"s_add_u32 s{sT3}, s{sT2}, 65536")
        a(f"buffer_store_dwordx4 {vr(P,4)}, v{vA16}, {sr(WS,4)}, s{sT2} offen")
        a(f"buffer_store_dwordx4 {vr(P+4,4)}, v{vA16}, {sr(WS,4)}, s{sT3} offen")
        a(f"s_lshl_b32 s{sT2}, s{sT1}, 9")
        a(f"s_add_u32 s{sT2}, s{sT2}, {WS_QB}")
        a(f"v_mov_b32 v{n0+1}, 0")
        a(f"buffer_store_dwordx2 {vr(P+8,2)}, v{vBq}, {sr(WS,4)}, s{sT2} offen")
        a(f"buffer_store_dwordx2 {vr(n0,2)}, v{vBq}, {sr(WS,4)}, s{sT2} offen offset:256")
        a(f"s_branch {end}")
        a.label(f"{name}_p{p}k")
        a(f"s_sub_u32 s{sT1}, s{sT0}, 32")
        a(f"s_lshl_b32 s{sT1}, s{sT1}, 6")
        a(f"s_add_u32 s{sT1}, s{sT1}, s{sQT}")
        a(f"s_mul_i32 s{sT2}, s{sT1}, {KVT}")
        a(f"s_add_u32 s{sT2}, s{sT2}, {WS_KV}")
        a(f"s_add_u32 s{sT3}, s{sT2}, {64*KVT}")
        a(f"buffer_store_dwordx4 {vr(P,4)}, v{vA16}, {sr(WS,4)}, s{sT2} offen")
        a(f"buffer_store_dwordx4 {vr(P+4,4)}, v{vA16}, {sr(WS,4)}, s{sT3} offen")
        a(f"buffer_store_dwordx2 {vr(P+8,2)}, v{vBk}, {sr(WS,4)}, s{sT2} offen offset:1024")
        for ror in (8, 4, 2, 1):
            a.nop(2)
            a(f"v_max_f32_dpp v{n0}, v{n0}, v{n0} row_ror:{ror} row_mask:0xf bank_mask:0xf")
        a(f"v_mov_b32 v{n1}, v{n0}")
        a(f"s_lshl_b32 s{sT3}, s{sT1}, 2")
        a(f"s_add_u32 s{sT3}, s{sT3}, {WS_KMAX}")
        a(f"v_permlane16_swap_b32 v{n0}, v{n1}")
        a(f"v_max_f32 v{n0}, v{n0}, v{n1}")
        a("s_mov_b32 exec_lo, 1")
        a("s_mov_b32 exec_hi, 1")
        a(f"buffer_store_dword v{n0}, v{vNk}, {sr(WS,4)}, s{sT3} offen")
        a("s_mov_b64 exec, -1")
        a.label(end)
    if diag: a("s_waitcnt vmcnt(0)")
    a.stamp(7); a.stamp(9, True)
    a.dump_stamps(10, WS, sWV, WS_DIAG)
    a("s_endpgm")
    a.label(f"{name}_V")
    mainloop(True)
    cswrite()
    vV = vT
    a(f"s_sub_u32 s{sT0}, s{sNT}, 11")
    a(f"s_lshl_b32 s{sT0}, s{sT0}, 7")
    a(f"s_mov_b32 s{sT1}, {64*KVT}")
    a(f"v_mul_u32_u24 v{t3}, 320, v{vH}")
    for b in range(4):
        a(f"v_add_u32 v{vV+b}, s{sT0}, v{vI}")
        if b: a(f"v_add_u32 v{vV+b}, {32*b}, v{vV+b}")
        a(f"v_mul_u32_u24 v{t1}, 3277, v{vV+b}")
        a(f"v_lshrrev_b32 v{t1}, 16, v{t1}")
        a(f"v_mul_u32_u24 v{t2}, 20, v{t1}")
        a(f"v_sub_u32 v{vV+b}, v{vV+b}, v{t2}")
        a(f"v_mul_lo_u32 v{t1}, v{t1}, s{sT1}")
        a(f"v_lshl_add_u32 v{vV+b}, v{vV+b}, 4, v{t3}")
        a(f"v_add_u32 v{vV+b}, v{vV+b}, v{t1}")
    a(f"s_lshl_b32 s{sT0}, s{sW}, 8")
    a(f"s_add_u32 s{sT0}, s{sT0}, {LDS_ST}")
    a(f"v_lshl_add_u32 v{t1}, v{vH}, 4, s{sT0}")
    a(f"v_lshlrev_b32 v{t2}, 2, v{vI}")
    a(f"v_add_u32 v{t2}, {LDS_CS}, v{t2}")
    cswrite2()
    a.stamp(6)
    M, R, CSv = vF, vF+16, vF+32
    for b in range(4):
        a(f"ds_read_b32 v{CSv+2*b}, v{t2} offset:{128*b}")
    for i in range(4):
        a(f"ds_read_b128 {vr(M+4*i,4)}, v{t1} offset:{32*i}")
        a(f"ds_read_b128 {vr(R+4*i,4)}, v{t1} offset:{128+32*i}")
    a(f"s_lshl_b32 s{sT0}, s{sMT}, 2")
    a(f"s_add_u32 s{sT0}, s{sT0}, s{sW}")
    a(f"s_mul_i32 s{sT0}, s{sT0}, {KVT}")
    a(f"s_add_u32 s{sT0}, s{sT0}, {WS_KV+1280}")
    a("s_waitcnt lgkmcnt(8)")
    P = vT + 8
    for b in range(4):
        a(f"v_mov_b32 v{CSv+2*b+1}, v{CSv+2*b}")
    a("s_waitcnt lgkmcnt(0)")
    for b in range(4):
        for k in range(8):
            A = vACC + 16*b + 2*k
            a(f"v_pk_fma_f32 {vr(A,2)}, {vr(M+2*k,2)}, {vr(CSv+2*b,2)}, {vr(A,2)} neg_lo:[1,0,0] neg_hi:[1,0,0]")
        for k in range(8):
            A = vACC + 16*b + 2*k
            a(f"v_pk_mul_f32 {vr(A,2)}, {vr(A,2)}, {vr(R+2*k,2)}")
        PP = P + 8*(b % 2)
        for k in range(8):
            a(f"v_cvt_pk_bf16_f32 v{PP+k}, v{vACC+16*b+2*k}, v{vACC+16*b+2*k+1}")
        a(f"buffer_store_dwordx4 {vr(PP,4)}, v{vV+b}, {sr(WS,4)}, s{sT0} offen")
        a(f"buffer_store_dwordx4 {vr(PP+4,4)}, v{vV+b}, {sr(WS,4)}, s{sT0} offen offset:640")
    if diag: a("s_waitcnt vmcnt(0)")
    a.stamp(7); a.stamp(9, True)
    a.dump_stamps(10, WS, sWV, WS_DIAG)
    a.label(f"{name}_end")
    a("s_endpgm")
    return a, dict(vgpr=232, sgpr=102, lds=K1_LDS+64, grid=256, block=512)
```

```python
from asmlib import *
from layout import *
from k1 import srd
import math

LDS_AX = 0
LDS_G = 73728
GREG = 21504
LDS_CNT = LDS_G + 4*GREG
LDS_TOT = LDS_CNT + 64
THRESH = 60.0

def lds_arrive(a, vA, vT, off):
    a("s_waitcnt lgkmcnt(0)")
    a("s_mov_b64 exec, 1")
    a(f"v_mov_b32 v{vT}, 1")
    a(f"ds_add_u32 v{vA}, v{vT} offset:{off}")
    a("s_mov_b64 exec, -1")
def lds_wait(a, vA, vT, sT, off, target, lab):
    a.label(lab)
    a(f"ds_read_b32 v{vT}, v{vA} offset:{off}")
    a("s_waitcnt lgkmcnt(0)")
    a(f"v_readfirstlane_b32 s{sT}, v{vT}")
    a.nop(1)
    a(f"s_cmp_ge_u32 s{sT}, {target}")
    a(f"s_cbranch_scc0 {lab}")
def lds_sync(a, vA, vT, sT, off, target, lab):
    lds_arrive(a, vA, vT, off); lds_wait(a, vA, vT, sT, off, target, lab)

def gen_k2(name, diag=False, R=4, R2=4, do_attn=True, do_gemm=True, prio_attn=0, prio_mm=0, prio_va=3, rot=True, xp='', kv='ring', slp=4):
    a = Asm(); a.diag = diag
    LDS_MX = LDS_AX + 15360
    sW, sWV = 3, 37
    WS, W1, B1, W2, B2, X = 20, 12, 16, 60, 64, 68
    sT0, sT1, sT2, sT3 = 28, 29, 30, 31
    sXC, sJ = 10, 11
    vL, vI, vH, vCNT = 1, 2, 3, 4
    a.label(name)
    a(f"s_cmp_ge_u32 s2, 256")
    a(f"s_cbranch_scc1 {name}_end")
    a.stamp(0); a.stamp(8, True)
    a("s_load_dwordx2 s[8:9], s[0:1], 80")
    a("s_load_dwordx8 s[72:79], s[0:1], 32")
    a("s_load_dwordx2 s[4:5], s[0:1], 0")
    a("s_load_dwordx2 s[6:7], s[0:1], 16")
    a("s_load_dwordx2 s[26:27], s[0:1], 64")
    a("v_lshrrev_b32 v2, 6, v0")
    a(f"v_and_b32 v{vL}, 63, v0")
    a(f"v_readfirstlane_b32 s{sWV}, v2")
    a(f"s_and_b32 s{sXC}, s2, 7")
    a(f"s_lshr_b32 s{sJ}, s2, 3")
    a(f"s_and_b32 s{sW}, s{sWV}, 3")
    a(f"v_and_b32 v{vI}, 31, v{vL}")
    a(f"v_lshrrev_b32 v{vH}, 5, v{vL}")
    a(f"v_mov_b32 v{vCNT}, {LDS_CNT}")
    a(f"s_cmp_ge_u32 s{sWV}, 4")
    a(f"s_cbranch_scc1 {name}_G")
    if prio_attn: a(f"s_setprio {prio_attn}")
    sHD, sQB, sKV, sKV0, sCnt, sQ = 32, 33, 34, 35, 36, 38
    sE_V, sE_LO, sE_HI = 40, 42, 44
    vKA, vKB, vV, t0, t1, t2, t3 = 5, 6, 7, 8, 9, 10, 11
    KVS = lambda s: 12 + 14*s
    P = 40; S = lambda i: 48 + 16*(i % 2); Q = lambda j: 80 + 6*j; O = lambda j: 128 + 16*j
    a(f"s_and_b32 s{sHD}, s{sJ}, 3")
    a(f"s_lshl_b32 s{sT0}, s{sXC}, 2")
    a(f"s_add_u32 s{sHD}, s{sHD}, s{sT0}")
    a(f"s_lshr_b32 s{sQB}, s{sJ}, 2")
    a(f"s_mov_b32 s{sE_V}, 0xfffff")
    a(f"s_mov_b32 s{sE_V+1}, 0xfffff")
    a(f"s_mov_b32 s{sE_LO}, -1")
    a(f"s_mov_b32 s{sE_LO+1}, 0")
    a(f"s_mov_b32 s{sE_HI}, 0")
    a(f"s_mov_b32 s{sE_HI+1}, -1")
    a(f"v_lshlrev_b32 v{vKA}, 4, v{vL}")
    a(f"v_lshlrev_b32 v{vKB}, 3, v{vL}")
    a(f"v_mul_u32_u24 v{t0}, 20, v{vH}")
    a(f"v_add_u32 v{t0}, v{t0}, v{vI}")
    a(f"v_lshlrev_b32 v{vV}, 4, v{t0}")
    a(f"v_lshlrev_b32 v{t2}, 2, v{vL}")
    a(f"s_lshl_b32 s{sT0}, s{sHD}, 6")
    a(f"s_lshl_b32 s{sT1}, s{sW}, 4")
    a(f"s_add_u32 s{sT1}, s{sT1}, s{sT0}")
    a(f"s_mul_i32 s{sKV0}, s{sT1}, {KVT}")
    a(f"s_add_u32 s{sKV0}, s{sKV0}, {WS_KV}")
    a(f"s_lshl_b32 s{sT1}, s{sQB}, 3")
    a(f"s_add_u32 s{sQ}, s{sT0}, s{sT1}")
    a(f"s_lshl_b32 s{sT3}, s{sW}, 1")
    a(f"v_cmp_eq_u32 vcc, 20, v{vI}")
    a(f"v_mov_b32 v{t0}, 0x3f803f80")
    a(f"s_lshl_b32 s{sT2}, s{sHD}, 8")
    a(f"s_add_u32 s{sT2}, s{sT2}, {WS_KMAX}")
    a(f"v_cndmask_b32 v{t1}, 0, v{t0}, vcc")
    for s in range(2):
        for k in range(4, 12): a(f"v_mov_b32 v{KVS(s)+k}, v{t1}")
        a(f"v_mov_b32 v{KVS(s)+12}, v{t0}")
        a(f"v_mov_b32 v{KVS(s)+13}, 0x3f80")
    for k in range(8): a(f"v_mov_b32 v{P+k}, 0")
    sRB, sSL, sSD = 39, 46, 47
    a(f"s_mov_b32 s{sKV}, s{sKV0}")
    a(f"s_mul_i32 s{sRB}, s{sW}, 18432")
    a(f"s_mov_b32 s{sSL}, s{sRB}")
    a(f"s_mov_b32 s{sSD}, s{sRB}")
    sRE = 64
    a(f"s_add_u32 s{sRE}, s{sRB}, 15360")
    a("s_waitcnt lgkmcnt(0)")
    srd(a, WS, 8, WS_SIZE)
    if not do_attn:
        a("s_barrier"); a("s_endpgm")
    def kvdma():
        L = []
        for k in range(5):
            L.append(f"s_add_u32 m0, s{sSD}, {(k//4)*4096}" if k % 4 == 0 else None)
            if k == 4: L.append(f"s_add_u32 s{sKV}, s{sKV}, 4096")
            elif k == 0: L.append("s_nop 0")
            L.append(f"buffer_load_dwordx4 v{vKA}, {sr(WS,4)}, s{sKV} offen offset:{(k%4)*1024} lds")
        L += [f"s_add_u32 s{sKV}, s{sKV}, 1024",
              f"s_add_u32 s{sSD}, s{sSD}, 5120",
              f"s_sub_u32 s{sT0}, s{sSD}, 15360",
              f"s_cmp_eq_u32 s{sT0}, s{sRB}",
              f"s_cselect_b32 s{sSD}, s{sRB}, s{sSD}"]
        return [x for x in L if x]
    a(f"buffer_load_dword v{t3}, v{t2}, {sr(WS,4)}, s{sT2} offen")
    if kv == "ring":
        for x in kvdma(): a(x)
    for j in range(8):
        a(f"s_xor_b32 s{sT0}, s{sT3}, {j}")
        a(f"s_add_u32 s{sT0}, s{sT0}, s{sQ}")
        a(f"s_lshl_b32 s{sT1}, s{sT0}, 9")
        a(f"s_add_u32 s{sT1}, s{sT1}, {WS_QB}")
        a(f"buffer_load_dwordx2 {vr(Q(j)+4,2)}, v{vKB}, {sr(WS,4)}, s{sT1} offen")
        a(f"s_lshl_b32 s{sT1}, s{sT0}, 10")
        a(f"s_add_u32 s{sT1}, s{sT1}, {WS_QA}")
        a(f"buffer_load_dwordx4 {vr(Q(j),4)}, v{vKA}, {sr(WS,4)}, s{sT1} offen")
    def kvaddr():
        return [f"v_add_u32 v{t0}, s{sSL}, v{vKA}", f"v_add_u32 v{t1}, s{sSL}, v{vKB}", f"v_add_u32 v{t2}, s{sSL}, v{vV}"]
    def kvadv():
        return [f"s_add_u32 s{sSL}, s{sSL}, 5120",
                f"s_sub_u32 s{sT0}, s{sSL}, 15360",
                f"s_cmp_eq_u32 s{sT0}, s{sRB}",
                f"s_cselect_b32 s{sSL}, s{sRB}, s{sSL}"]
    def kvread(s, o):
        K = KVS(s)
        return [f"ds_read_b128 {vr(K,4)}, v{t0} offset:{o}",
                f"s_mov_b64 exec, {sr(sE_LO,2)}",
                f"ds_read_b64 {vr(K+12,2)}, v{t1} offset:{o+1024}",
                f"s_mov_b64 exec, {sr(sE_V,2)}",
                f"ds_read_b128 {vr(K+4,4)}, v{t2} offset:{o+1280}",
                f"ds_read_b128 {vr(K+8,4)}, v{t2} offset:{o+1920}",
                f"s_mov_b64 exec, -1"]
    if kv == "ring":
        for x in kvdma(): a(x)
    else:
        K = KVS(0)
        for x in [f"buffer_load_dwordx4 {vr(K,4)}, v{vKA}, {sr(WS,4)}, s{sKV} offen",
                f"s_mov_b64 exec, {sr(sE_LO,2)}", f"buffer_load_dwordx2 {vr(K+12,2)}, v{vKB}, {sr(WS,4)}, s{sKV} offen offset:1024",
                f"s_mov_b64 exec, {sr(sE_V,2)}", f"buffer_load_dwordx4 {vr(K+4,4)}, v{vV}, {sr(WS,4)}, s{sKV} offen offset:1280",
                f"buffer_load_dwordx4 {vr(K+8,4)}, v{vV}, {sr(WS,4)}, s{sKV} offen offset:1920", "s_mov_b64 exec, -1", f"s_add_u32 s{sKV}, s{sKV}, {KVT}"]: a(x)
    a("s_barrier")
    def zeroO():
        for j in range(8): a(f"v_mfma_f32_32x32x16_bf16 {vr(O(j),16)}, {vr(P,4)}, {vr(P,4)}, 0")
    zeroO()
    a(f"s_waitcnt vmcnt({26 if kv == 'ring' else 20})")
    for ror in (8, 4, 2, 1):
        a.nop(2)
        a(f"v_max_f32_dpp v{t3}, v{t3}, v{t3} row_ror:{ror} row_mask:0xf bank_mask:0xf")
    a(f"v_mov_b32 v{t0}, v{t3}")
    a.nop(2)
    a(f"v_permlane16_swap_b32 v{t3}, v{t0}")
    a(f"v_max_f32 v{t3}, v{t3}, v{t0}")
    a(f"v_mov_b32 v{t0}, v{t3}")
    a.nop(2)
    a(f"v_permlane32_swap_b32 v{t3}, v{t0}")
    a(f"v_max_f32 v{t3}, v{t3}, v{t0}")
    a(f"v_mul_f32 v{t3}, {hexf(-(1+2**-6))}, v{t3}")
    a(f"v_mov_b32 v{t1}, {hexf(-THRESH)}")
    a.stamp(1)
    a(f"s_waitcnt vmcnt({5 if kv == 'ring' else 4})")
    a.stamp(2)
    a(f"s_mov_b64 exec, {sr(sE_HI,2)}")
    for j in range(8):
        a(f"v_mul_f32 v{Q(j)+4}, v{Q(j)+4}, v{t3}")
    for j in range(8):
        a(f"v_cmp_nge_f32 {sr(48+2*j,2)}, v{Q(j)+4}, v{t1}")
    for j in range(8):
        a(f"v_cvt_pk_bf16_f32 v{Q(j)+4}, v{Q(j)+4}, v{Q(j)+5}")
    a("s_mov_b64 exec, -1")
    for j in range(1, 8):
        a(f"s_or_b32 s49, s49, s{49+2*j}")
    a(f"s_cbranch_scc1 {name}_FB")
    a.label(f"{name}_M")
    def QK(n, s):
        j = n % 8; K = KVS(s)
        return (f"v_mfma_f32_32x32x16_bf16 {vr(S(n),16)}, {vr(K,4)}, {vr(Q(j),4)}, 0",
                f"v_mfma_f32_32x32x8_bf16 {vr(S(n),16)}, {vr(K+12,2)}, {vr(Q(j)+4,2)}, {vr(S(n),16)}")
    def PV(j, s, m):
        return f"v_mfma_f32_32x32x16_bf16 {vr(O(j),16)}, {vr(KVS(s)+4+4*m,4)}, {vr(P+4*m,4)}, {vr(O(j),16)}"
    if kv == "ring":
        for x in kvaddr() + kvread(0, 0): a(x)
        a("s_waitcnt lgkmcnt(0)")
    else:
        a("s_waitcnt vmcnt(2)")
    for x in QK(0, 0): a(x)
    a(f"s_mov_b32 s{sCnt}, 8")
    a.nop(10)
    a.stamp(3)
    def dload(s):
        K = KVS(s)
        return [[f"buffer_load_dwordx4 {vr(K,4)}, v{vKA}, {sr(WS,4)}, s{sKV} offen"],
                [f"s_mov_b64 exec, {sr(sE_LO,2)}", f"buffer_load_dwordx2 {vr(K+12,2)}, v{vKB}, {sr(WS,4)}, s{sKV} offen offset:1024", "s_mov_b64 exec, -1"],
                [f"s_mov_b64 exec, {sr(sE_V,2)}", f"buffer_load_dwordx4 {vr(K+4,4)}, v{vV}, {sr(WS,4)}, s{sKV} offen offset:1280", "s_mov_b64 exec, -1"],
                [f"s_mov_b64 exec, {sr(sE_V,2)}", f"buffer_load_dwordx4 {vr(K+8,4)}, v{vV}, {sr(WS,4)}, s{sKV} offen offset:1920", "s_mov_b64 exec, -1", f"s_add_u32 s{sKV}, s{sKV}, {KVT}"]]
    def rd(s, o):
        K = KVS(s)
        return [[f"ds_read_b128 {vr(K,4)}, v{t0} offset:{o}"],
                [f"s_mov_b64 exec, {sr(sE_LO,2)}", f"ds_read_b64 {vr(K+12,2)}, v{t1} offset:{o+1024}", "s_mov_b64 exec, -1"],
                [f"s_mov_b64 exec, {sr(sE_V,2)}", f"ds_read_b128 {vr(K+4,4)}, v{t2} offset:{o+1280}", f"ds_read_b128 {vr(K+8,4)}, v{t2} offset:{o+1920}", "s_mov_b64 exec, -1"]]
    def dm(k):
        L = [f"buffer_load_dwordx4 v{vKA}, {sr(WS,4)}, s{sKV} offen offset:{(k%4)*1024} lds"]
        if k == 3: L += [f"s_add_u32 m0, s{sSD}, 4096", f"s_add_u32 s{sKV}, s{sKV}, 4096"]
        if k == 4: L += [f"s_add_u32 s{sKV}, s{sKV}, 1024"]
        return L
    def abody(lab, dma):
      a(".p2align 3")
      a.label(lab)
      for s in range(2):
        for j in range(8):
            sa = S(j)
            M1, M2 = QK(j+1, s if j < 7 else 1-s)
            M3 = PV((j-1) % 8, s if j > 0 else 1-s, 1)
            M4 = PV(j, s, 0)
            e = [f"v_exp_f32 v{sa+i}, v{sa+i}" for i in range(16)]
            c = [f"v_cvt_pk_bf16_f32 v{P+i}, v{sa+2*i}, v{sa+2*i+1}" for i in range(8)]
            pre = []; x1 = []; x3 = []; x4 = []
            if kv == "ring":
                if j == 7: pre = ["s_waitcnt lgkmcnt(0)"]
                r = rd(1-s, KVT if s == 0 else 0)
                if j < 3: x3 = r[j]
                if s == 0 and dma:
                    if j == 0: x4 = [f"s_mov_b32 m0, s{sSD}"]
                    if 1 <= j <= 5 and 'N' not in xp: x1 = dm(j-1)
                    if j == 6: x1 = [f"s_add_u32 s{sSD}, s{sSD}, 5120", f"s_cmp_eq_u32 s{sSD}, s{sRE}", f"s_cselect_b32 s{sSD}, s{sRB}, s{sSD}"]
                if s == 0 and j == 3: x3 = [f"s_add_u32 s{sSL}, s{sSL}, 5120", f"s_cmp_eq_u32 s{sSL}, s{sRE}", f"s_cselect_b32 s{sSL}, s{sRB}, s{sSL}"]
                if s == 0 and j == 7: x3 = kvaddr() + [f"s_waitcnt vmcnt({5 if dma else 0})"]
            elif kv == "direct":
                if j == 7: pre = ["s_waitcnt vmcnt(2)"]
                if j == 0: x3 = ["s_waitcnt vmcnt(0)"] + sum(dload(1-s), [])
            elif kv == "spread":
                d = dload(1-s)
                if j == 7: pre = ["s_waitcnt vmcnt(2)"]
                if j == 0: x3 = ["s_waitcnt vmcnt(0)"] + d[0]
                if 1 <= j <= 3: x3 = d[j]
            for x in pre: a(x)
            a(M1)
            for x in x1: a(x)
            for x in e[0:4]: a(x)
            a(M2)
            for x in e[4:8]: a(x)
            a(c[0]); a(c[1])
            a(M3)
            for x in x3: a(x)
            a(c[2]); a(c[3])
            for x in e[8:12]: a(x)
            a(M4)
            for x in x4: a(x)
            if j == 7 and s == 1:
                a(f"s_sub_u32 s{sCnt}, s{sCnt}, 1")
                a(f"s_cmp_lg_u32 s{sCnt}, {2 if (kv == 'ring' and dma) else 0}")
            for x in e[12:16]: a(x)
            for x in c[4:8]: a(x)
      a(f"s_cbranch_scc1 {lab}")
    abody(f"{name}_AL", True)
    if kv == "ring": abody(f"{name}_AL2", False)
    a.nop(1)
    a(PV(7, 1, 1))
    a.stamp(4)
    a(f"v_add_u32 v{t0}, s{sRB}, v{vKA}")
    a("s_nop 0")
    for j in range(2, 8):
        for k in range(3):
            a(f"ds_write_b128 v{t0}, {vr(O(j)+4*k,4)} offset:{LDS_AX + (j-2)*3072 + k*1024}")
    for p in range(1, 4):
        a(f"s_xor_b32 s{sT1}, s{sW}, {p}")
        a(f"s_mul_i32 s{sT1}, s{sT1}, 18432")
        a(f"s_add_u32 s{sT1}, s{sT1}, {LDS_AX + (p-1)*6144}")
        a(f"v_add_u32 v{t0+p}, s{sT1}, v{vKA}")
    lds_arrive(a, vCNT, t0, 0)
    a(f"s_lshl_b32 s{sT0}, s{sQB}, 2")
    a(f"s_add_u32 s{sT3}, s{sT0}, s{sW}")
    a(f"s_lshl_b32 s{sT0}, s{sT3}, 6")
    a(f"s_add_u32 s{sT0}, s{sT0}, s{sHD}")
    a(f"s_lshl_b32 s{sT1}, s{sT0}, 8")
    a(f"s_add_u32 s{sT1}, s{sT1}, {WS_OL}")
    a(f"s_lshl_b32 s{sT0}, s{sT0}, 10")
    a(f"s_add_u32 s{sT0}, s{sT0}, {WS_O}")
    a(f"s_lshl_b32 s{sKV}, s{sHD}, 5")
    a(f"s_add_u32 s{sKV}, s{sKV}, s{sT3}")
    a(f"s_lshl_b32 s{sKV}, s{sKV}, 6")
    a(f"s_add_u32 s{sKV}, s{sKV}, {WS_OFL}")
    a("s_waitcnt vmcnt(0)")
    lds_wait(a, vCNT, t0, sT2, 0, 4, f"{name}_s0")
    a.stamp(5)
    Rb = 12
    for p in range(1, 4):
        for jj in range(2):
            for k in range(3):
                a(f"ds_read_b128 {vr(Rb + ((p-1)*6 + jj*3 + k)*4, 4)}, v{t0+p} offset:{jj*3072 + k*1024}")
    for p in range(1, 4):
        a(f"s_waitcnt lgkmcnt({(3-p)*6})")
        for jj in range(2):
            for k in range(0, 12, 2):
                A = O(jj) + k; B = Rb + ((p-1)*6 + jj*3)*4 + k
                a(f"v_pk_add_f32 {vr(A,2)}, {vr(A,2)}, {vr(B,2)}")
    u = 88
    for jj in range(2):
        a(f"v_mov_b32 v{u+2*jj}, v{O(jj)+8}")
        a(f"v_mov_b32 v{u+2*jj+1}, v{O(jj)+8}")
    a.nop(1)
    for jj in range(2):
        a(f"v_permlane32_swap_b32 v{u+2*jj}, v{u+2*jj+1}")
    for jj in range(2):
        a(f"v_rcp_f32 v{u+2*jj}, v{u+2*jj+1}")
    a.nop(1)
    for jj in range(2):
        a(f"v_mov_b32 v{u+2*jj+1}, v{u+2*jj}")
    for jj in range(2):
        for k in range(0, 12, 2):
            A = O(jj) + k
            a(f"v_pk_mul_f32 {vr(A,2)}, {vr(A,2)}, {vr(u+2*jj,2)}")
        PP = 96 + 8*jj
        for k in range(6):
            a(f"v_cvt_pk_bf16_f32 v{PP+k}, v{O(jj)+2*k}, v{O(jj)+2*k+1}")
        a(f"buffer_store_dwordx4 {vr(PP,4)}, v{vKA}, {sr(WS,4)}, s{sT0} offen sc1")
        a(f"s_mov_b64 exec, {sr(sE_LO,2)}")
        a(f"buffer_store_dwordx2 {vr(PP+4,2)}, v{vKB}, {sr(WS,4)}, s{sT1} offen sc1")
        a(f"s_mov_b64 exec, -1")
        if jj == 0:
            a(f"s_add_u32 s{sT0}, s{sT0}, 32768")
            a(f"s_add_u32 s{sT1}, s{sT1}, 8192")
    a.stamp(6)
    a(f"v_mov_b32 v{t0}, 1")
    a(f"v_mov_b32 v{t1}, 0")
    a("s_mov_b64 exec, 1")
    a("s_waitcnt vmcnt(0)")
    a(f"buffer_store_dword v{t0}, v{t1}, {sr(WS,4)}, s{sKV} offen sc1")
    if diag: a("s_waitcnt vmcnt(0)")
    a.stamp(7); a.stamp(9, True)
    a.dump_stamps(10, WS, sWV, WS_DIAG)
    a("s_endpgm")

    a.label(f"{name}_FB")
    def kload():
        K = KVS(1)
        return [f"buffer_load_dwordx4 {vr(K,4)}, v{vKA}, {sr(WS,4)}, s{sKV0} offen",
                f"s_mov_b64 exec, {sr(sE_LO,2)}",
                f"buffer_load_dwordx2 {vr(K+12,2)}, v{vKB}, {sr(WS,4)}, s{sKV0} offen offset:1024",
                f"s_mov_b64 exec, -1",
                f"s_add_u32 s{sKV0}, s{sKV0}, {KVT}"]
    MX = 128
    a(f"s_mov_b64 exec, {sr(sE_HI,2)}")
    for j in range(8): a(f"v_mov_b32 v{Q(j)+4}, 0")
    a("s_mov_b64 exec, -1")
    for j in range(8): a(f"v_mov_b32 v{MX+j}, 0xff800000")
    a(f"s_mov_b32 s{sCnt}, 16")
    a.label(f"{name}_FL")
    for x in kload(): a(x)
    a("s_waitcnt vmcnt(0)")
    for j in range(8):
        for x in QK(j, 1): a(x)
        a.nop(12)
        for k in range(0, 16, 2):
            a(f"v_max3_f32 v{MX+j}, v{MX+j}, v{S(j)+k}, v{S(j)+k+1}")
    a(f"s_sub_u32 s{sCnt}, s{sCnt}, 1")
    a(f"s_cmp_lg_u32 s{sCnt}, 0")
    a(f"s_cbranch_scc1 {name}_FL")
    for j in range(8):
        a(f"v_mov_b32 v{MX+8+j}, v{MX+j}")
    a.nop(1)
    for j in range(8):
        a(f"v_permlane32_swap_b32 v{MX+j}, v{MX+8+j}")
    for j in range(8):
        a(f"v_max_f32 v{MX+j}, v{MX+j}, v{MX+8+j}")
    a(f"s_lshl_b32 s{sT3}, s{sW}, 1")
    a(f"v_lshlrev_b32 v{t2}, 2, v{vI}")
    for j in range(8):
        a(f"s_xor_b32 s{sT0}, s{sT3}, {j}")
        a(f"s_lshl_b32 s{sT0}, s{sT0}, 7")
        if LDS_MX: a(f"s_add_u32 s{sT0}, s{sT0}, {LDS_MX}")
        a(f"v_add_u32 v{MX+8+j}, s{sT0}, v{t2}")
    for j in range(8):
        a(f"v_add_u32 v{t0}, s{sRB}, v{MX+8+j}")
        a(f"ds_write_b32 v{t0}, v{MX+j}")
    lds_sync(a, vCNT, t0, sT0, 8, 4, f"{name}_s2")
    for j in range(8):
        for ww in range(4):
            a(f"ds_read_b32 v{MX+16+4*j+ww}, v{MX+8+j} offset:{ww*18432}")
    a("s_waitcnt lgkmcnt(0)")
    a(f"s_mov_b64 exec, {sr(sE_HI,2)}")
    for j in range(8):
        b = MX+16+4*j
        a(f"v_max3_f32 v{b}, v{b}, v{b+1}, v{b+2}")
        a(f"v_max_f32 v{b}, v{b}, v{b+3}")
        a(f"v_sub_f32 v{b}, 0, v{b}")
        a(f"v_and_b32 v{b+1}, 0xffff0000, v{b}")
        a(f"v_sub_f32 v{b}, v{b}, v{b+1}")
        a(f"v_and_b32 v{b+2}, 0xffff0000, v{b}")
        a(f"v_sub_f32 v{b}, v{b}, v{b+2}")
        a(f"v_lshrrev_b32 v{b+1}, 16, v{b+1}")
        a(f"v_or_b32 v{Q(j)+4}, v{b+1}, v{b+2}")
        a(f"v_lshrrev_b32 v{Q(j)+5}, 16, v{b}")
    a("s_mov_b64 exec, -1")
    zeroO()
    a(f"s_branch {name}_M")
    a.label(f"{name}_G")
    a(f"s_setprio {prio_va}")
    a(f"v_mov_b32 v6, 0")
    a(f"v_mov_b32 v7, 0")
    a(f"ds_write_b64 v{vCNT}, v[6:7]")
    a(f"ds_write_b64 v{vCNT}, v[6:7] offset:8")
    a(f"ds_write_b64 v{vCNT}, v[6:7] offset:16")
    WO, OUT = 52, 56
    sDT, sFT, sH0, sH1, sWo, sM, sCnt, sDB, sFB, sST2, sDT2, sU, sW2, sFL = 32, 33, 34, 35, 36, 38, 39, 40, 41, 42, 43, 44, 45, 46
    sK1, sK2, sR0, sR1, sK3 = 47, 48, 49, 50, 51
    sWO, sXO = 24, 25
    vDA0, vDA1, vBO, vR0, vR1 = 5, 6, 7, 8, 9
    t0, t1, t2, t3 = 10, 11, 12, 13
    vXO, vLA, XB = 14, 19, 24
    Z = 36
    AF = lambda s: 40 + 8*s
    vU0, vU2, vD0, vD1, vQ0, vQ1, vFL = 56, 57, 58, 59, 60, 61, 62
    BF = lambda s: 64 + 8*s
    BI = 128; vDWp = 136; vB2 = 141
    vDW = (5, 6, 8, 9, 39)
    ACC = 160
    assert R == 4 and R2 == 4
    a(f"s_mul_i32 s{sT0}, s{sJ}, 52")
    a(f"s_lshr_b32 s{sT0}, s{sT0}, 8")
    a(f"s_mul_i32 s{sT1}, s{sT0}, 5")
    a(f"s_sub_u32 s{sT1}, s{sJ}, s{sT1}")
    a(f"s_and_b32 s{sT2}, s{sXC}, 1")
    a(f"s_mul_i32 s{sT3}, s{sT2}, 5")
    a(f"s_add_u32 s{sDT}, s{sT1}, s{sT3}")
    a(f"s_lshl_b32 s{sT2}, s{sT2}, 2")
    a(f"s_lshr_b32 s{sT3}, s{sJ}, 3")
    a(f"s_add_u32 s{sDT2}, s{sT2}, s{sT3}")
    a(f"s_lshr_b32 s{sT2}, s{sXC}, 1")
    a(f"s_mul_i32 s{sT3}, s{sT2}, 6")
    a(f"s_add_u32 s{sFT}, s{sT0}, s{sT3}")
    a(f"s_lshl_b32 s{sT2}, s{sT2}, 3")
    a(f"s_and_b32 s{sT3}, s{sJ}, 7")
    a(f"s_add_u32 s{sST2}, s{sT2}, s{sT3}")
    a(f"s_and_b32 s{sT0}, s{sW}, 1")
    a(f"s_lshl_b32 s{sT1}, s{sDT}, 1")
    a(f"s_add_u32 s{sDB}, s{sT1}, s{sT0}")
    a(f"s_xor_b32 s{sT2}, s{sDB}, 1")
    a(f"s_lshl_b32 s{sT3}, s{sW}, 15")
    a(f"s_add_u32 s{sT3}, s{sT3}, {WS_HT}")
    a(f"s_lshl_b32 s{sH0}, s{sDB}, 17")
    a(f"s_add_u32 s{sH0}, s{sH0}, s{sT3}")
    a(f"s_lshl_b32 s{sH1}, s{sT2}, 17")
    a(f"s_add_u32 s{sH1}, s{sH1}, s{sT3}")
    a(f"s_mul_i32 s{sWo}, s{sW}, {512*3072}")
    a(f"s_lshl_b32 s{sT0}, s{sFT}, 7")
    a(f"s_add_u32 s{sWo}, s{sWo}, s{sT0}")
    a(f"s_mul_i32 s{sM}, s{sW}, {GREG}")
    a(f"s_add_u32 s{sM}, s{sM}, {LDS_G}")
    a(f"s_mul_i32 s{sU}, s{sDT2}, {5*96*512}")
    a(f"s_mul_i32 s{sT0}, s{sW}, {24*512}")
    a(f"s_add_u32 s{sU}, s{sU}, s{sT0}")
    a(f"s_add_u32 s{sU}, s{sU}, {WS_U}")
    a(f"s_mul_i32 s{sW2}, s{sW}, {384*4096}")
    a(f"s_lshl_b32 s{sT0}, s{sST2}, 7")
    a(f"s_add_u32 s{sW2}, s{sW2}, s{sT0}")
    a(f"s_mul_i32 s{sT0}, s{sDT2}, 5")
    a(f"s_lshr_b32 s{sT0}, s{sT0}, 1")
    a(f"s_mul_i32 s{sT0}, s{sT0}, 48")
    a(f"s_mul_i32 s{sT1}, s{sW}, 12")
    a(f"s_add_u32 s{sT0}, s{sT0}, s{sT1}")
    a(f"s_lshl_b32 s{sT0}, s{sT0}, 6")
    a(f"s_add_u32 s{sFL}, s{sT0}, {WS_FLG}")
    a(f"s_mul_i32 s{sT1}, s{sDT2}, 160")
    a(f"s_mul_i32 s{sWO}, s{sW}, {160*1280}")
    a(f"s_add_u32 s{sWO}, s{sWO}, s{sT1}")
    a(f"s_mul_i32 s{sXO}, s{sST2}, {64*1280}")
    a(f"s_add_u32 s{sXO}, s{sXO}, s{sT1}")
    if rot:
        a(f"s_mul_i32 s{sT2}, s{sJ}, 52")
        a(f"s_lshr_b32 s{sT2}, s{sT2}, 8")
        a(f"s_mul_i32 s{sT3}, s{sT2}, 25")
        a(f"s_mul_i32 s{sK1}, s{sJ}, 6")
        a(f"s_sub_u32 s{sK1}, s{sK1}, s{sT3}")
        a(f"s_and_b32 s{sK1}, s{sK1}, 31")
        a(f"s_lshl_b32 s{sT2}, s{sK1}, 10")
        a(f"s_add_u32 s{sH0}, s{sH0}, s{sT2}")
        a(f"s_add_u32 s{sH1}, s{sH1}, s{sT2}")
        a(f"s_mul_i32 s{sT2}, s{sK1}, {16*3072}")
        a(f"s_add_u32 s{sWo}, s{sWo}, s{sT2}")
        a(f"s_lshr_b32 s{sT2}, s{sJ}, 3")
        a(f"s_lshl_b32 s{sT2}, s{sT2}, 1")
        a(f"s_and_b32 s{sT3}, s{sJ}, 7")
        a(f"s_add_u32 s{sT2}, s{sT2}, s{sT3}")
        a(f"s_and_b32 s{sT2}, s{sT2}, 7")
        a(f"s_mul_i32 s{sK2}, s{sT2}, 3")
        a(f"s_lshl_b32 s{sT2}, s{sK2}, 9")
        a(f"s_add_u32 s{sU}, s{sU}, s{sT2}")
        a(f"s_lshl_b32 s{sT2}, s{sK2}, 16")
        a(f"s_add_u32 s{sW2}, s{sW2}, s{sT2}")
        a(f"s_mov_b32 s{sK3}, s{sK2}")
    a(f"s_lshr_b32 s{sT0}, s{sW}, 1")
    a(f"s_lshl_b32 s{sT1}, s{sFT}, 1")
    a(f"s_add_u32 s{sFB}, s{sT1}, s{sT0}")
    a(f"v_lshlrev_b32 v{vBO}, 4, v{vL}")
    a(f"v_lshrrev_b32 v{t0}, 3, v{vL}")
    a(f"v_bfe_u32 v{t1}, v{vL}, 4, 1")
    a(f"v_lshlrev_b32 v{t3}, 2, v{t1}")
    a(f"v_and_b32 v{t2}, 7, v{vL}")
    a(f"v_xor_b32 v{t3}, v{t3}, v{t2}")
    a(f"v_lshlrev_b32 v{t3}, 4, v{t3}")
    a(f"v_mul_u32_u24 v{vDA0}, 3072, v{t0}")
    a(f"v_add_u32 v{vDA0}, v{vDA0}, v{t3}")
    a(f"v_add_u32 v{vDA1}, {8*3072}, v{vDA0}")
    a(f"v_lshl_add_u32 v{vD0}, v{t0}, 12, v{t3}")
    a(f"v_add_u32 v{vD1}, {8*4096}, v{vD0}")
    a(f"v_and_b32 v{t2}, 3, v{vL}")
    a(f"v_lshlrev_b32 v{t2}, 3, v{t2}")
    a(f"v_lshl_add_u32 v{t1}, v{t1}, 5, v{t2}")
    a(f"v_add_u32 v{t1}, s{sM}, v{t1}")
    a(f"v_bfe_u32 v{t0}, v{vL}, 2, 2")
    a(f"v_lshl_add_u32 v{t2}, v{vH}, 2, v{t0}")
    a(f"v_mul_u32_u24 v{t2}, 160, v{t2}")
    a(f"v_add_u32 v{t2}, 8192, v{t2}")
    a(f"v_add_u32 v146, v{t2}, v{t1}")
    a(f"v_mul_u32_u24 v{t2}, {36*160}, v{vH}")
    a(f"v_add_u32 v{t2}, {16*160}, v{t2}")
    a(f"v_add_u32 v147, v{t2}, v146")
    a(f"v_lshl_add_u32 v{t1}, v{t0}, 7, v{t1}")
    a(f"v_bfe_u32 v{t2}, v{vL}, 3, 1")
    a(f"v_lshl_add_u32 v{t0}, v{vH}, 9, v{t1}")
    a(f"v_lshl_add_u32 v{vQ0}, v{t2}, 6, v{t0}")
    a(f"v_xor_b32 v{vQ1}, 64, v{vQ0}")
    a(f"v_lshl_add_u32 v{t0}, v{vH}, 10, v{t1}")
    a(f"v_xor_b32 v{t2}, s{sT0}, v{t2}")
    a(f"v_lshl_add_u32 v{vR0}, v{t2}, 6, v{t0}")
    a(f"v_xor_b32 v{vR1}, 64, v{vR0}")
    assert LDS_G % 128 == 0 and GREG % 128 == 0
    a(f"v_and_b32 v{t1}, 15, v{vI}")
    a(f"v_lshlrev_b32 v{t1}, 4, v{t1}")
    a(f"v_lshl_add_u32 v{vU2}, v{vH}, 8, v{t1}")
    a(f"v_lshrrev_b32 v{t0}, 4, v{vI}")
    a(f"v_mul_u32_u24 v{t0}, {96*512}, v{t0}")
    a(f"v_add_u32 v{vU0}, v{vU2}, v{t0}")
    a(f"v_mul_u32_u24 v{t0}, 43, v{vL}")
    a(f"v_lshrrev_b32 v{t0}, 9, v{t0}")
    a(f"v_mul_u32_u24 v{t0}, 36, v{t0}")
    a(f"v_add_u32 v{t0}, v{t0}, v{vL}")
    a(f"v_lshlrev_b32 v{vFL}, 6, v{t0}")
    for j in range(5):
        a(f"v_add_u32 v{t0}, {64*j}, v{vL}")
        a(f"v_mul_u32_u24 v{t1}, 6554, v{t0}")
        a(f"v_lshrrev_b32 v{t1}, 16, v{t1}")
        a(f"v_mul_u32_u24 v{t2}, {1280-160}, v{t1}")
        a(f"v_lshl_add_u32 v{vDWp+j}, v{t0}, 4, v{t2}")
    a(f"v_and_b32 v{t3}, 0xff, v0")
    for k in range(5):
        a(f"v_add_u32 v{t0}, {256*k}, v{t3}")
        a(f"v_mul_u32_u24 v{t1}, 3277, v{t0}")
        a(f"v_lshrrev_b32 v{t1}, 16, v{t1}")
        a(f"v_mul_u32_u24 v{t2}, {1280-160}, v{t1}")
        a(f"v_lshl_add_u32 v{vXO+k}, v{t0}, 3, v{t2}")
        a(f"v_lshlrev_b32 v{t2}, 4, v{t1}")
        a(f"v_lshl_add_u32 v{t2}, v{t0}, 4, v{t2}")
        a(f"v_add_u32 v{vLA+k}, {LDS_G}, v{t2}")
        a(f"v_lshlrev_b32 v{vB2+k}, 1, v{t1}")
    a(f"v_lshlrev_b32 v{t3}, 3, v{vH}")
    for k in range(4): a(f"v_mov_b32 v{Z+k}, 0")
    a("s_waitcnt lgkmcnt(0)")
    srd(a, WS, 8, WS_SIZE)
    srd(a, W1, 72, 2048*1536*2)
    srd(a, B1, 74, 1536*2)
    srd(a, W2, 76, 1536*2048*2)
    srd(a, B2, 78, 2048*2)
    srd(a, X, 4, 2048*640*2)
    srd(a, WO, 6, 640*640*2)
    srd(a, OUT, 26, 2048*640*2)
    a("s_barrier")
    if not do_gemm: a("s_endpgm")
    a(f"s_cmp_ge_u32 s{sJ}, 30")
    a(f"s_cbranch_scc1 {name}_G2")
    def gload(slot):
        return [f"s_add_u32 m0, s{sM}, {slot*2048}",
                f"buffer_load_dwordx4 {vr(BF(slot),4)}, v{vBO}, {sr(WS,4)}, s{sH0} offen",
                f"buffer_load_dwordx4 v{vDA0}, {sr(W1,4)}, s{sWo} offen lds",
                f"s_add_u32 m0, s{sM}, {slot*2048+1024}",
                f"buffer_load_dwordx4 {vr(BF(slot)+4,4)}, v{vBO}, {sr(WS,4)}, s{sH1} offen",
                f"buffer_load_dwordx4 v{vDA1}, {sr(W1,4)}, s{sWo} offen lds",
                f"s_add_u32 s{sH0}, s{sH0}, 1024",
                f"s_add_u32 s{sH1}, s{sH1}, 1024",
                f"s_add_u32 s{sWo}, s{sWo}, {16*3072}"] + ([
                f"s_add_u32 s{sK1}, s{sK1}, 1",
                f"s_cmp_eq_u32 s{sK1}, 32",
                f"s_cselect_b32 s{sR0}, {32*1024}, 0",
                f"s_cselect_b32 s{sR1}, {32*16*3072}, 0",
                f"s_sub_u32 s{sH0}, s{sH0}, s{sR0}",
                f"s_sub_u32 s{sH1}, s{sH1}, s{sR0}",
                f"s_sub_u32 s{sWo}, s{sWo}, s{sR1}"] if rot else [])
    a(f"s_lshl_b32 s{sT1}, s{sFB}, 6")
    for i in range(4):
        a(f"buffer_load_dwordx2 {vr(BI+2*i,2)}, v{t3}, {sr(B1,4)}, s{sT1} offen offset:{16*i}")
    a(f"s_setprio {prio_mm}")
    for n in range(R-1):
        for x in gload(n): a(x)
    for k in range(4): a(f"v_mfma_f32_32x32x16_bf16 {vr(ACC+16*k,16)}, {vr(Z,4)}, {vr(Z,4)}, 0")
    def trs(slot, s):
        return [f"ds_read_b64_tr_b16 {vr(AF(s)+4*fb+2*h,2)}, v{vR0+fb} offset:{slot*2048+h*512}" for fb in range(2) for h in range(2)]
    a.stamp(1)
    a(f"s_waitcnt vmcnt({4*(R-2)})")
    for x in trs(0, 0): a(x)
    a(f"s_mov_b32 s{sCnt}, {32//R - 1}")
    def gbody(last):
        for n in range(R):
            if not last or n == 0:
                for x in gload((n-1) % R): a(x)
            if not last or n < R-1:
                a(f"s_waitcnt vmcnt({4*(R-2-(n if last else 0))})")
                for x in trs((n+1) % R, (n+1) % 2): a(x)
                a("s_waitcnt lgkmcnt(4)")
            else:
                a("s_waitcnt lgkmcnt(0)")
            for fb in range(2):
                for db in range(2):
                    C = ACC + 16*(2*fb+db)
                    a(f"v_mfma_f32_32x32x16_bf16 {vr(C,16)}, {vr(AF(n%2)+4*fb,4)}, {vr(BF(n)+4*db,4)}, {vr(C,16)}")
    a.label(f"{name}_GL")
    gbody(False)
    a(f"s_sub_u32 s{sCnt}, s{sCnt}, 1")
    a(f"s_cmp_lg_u32 s{sCnt}, 0")
    a(f"s_cbranch_scc1 {name}_GL")
    gbody(True)
    a.stamp(2)
    a(f"s_setprio {prio_va}")
    a(f"v_add_u32 v{t0}, s{sM}, v{vBO}")
    for p in range(1, 4):
        a(f"s_xor_b32 s{sT1}, s{sW}, {p}")
        a(f"s_mul_i32 s{sT1}, s{sT1}, {GREG}")
        a(f"s_add_u32 s{sT1}, s{sT1}, {LDS_G + 8192 + (p-1)*4096}")
        a(f"v_add_u32 v{t0+p}, s{sT1}, v{vBO}")
    for p in range(1, 4):
        for k in range(4):
            a(f"ds_write_b128 v{t0}, {vr(ACC+16*p+4*k,4)} offset:{8192+(p-1)*4096+k*1024}")
    lds_arrive(a, vCNT, t0, 4)
    BU = 112
    for i in range(8):
        a(f"v_lshlrev_b32 v{BU+2*i}, 16, v{BI+i}")
        a(f"v_and_b32 v{BU+2*i+1}, 0xffff0000, v{BI+i}")
    for k in range(0, 16, 2):
        a(f"v_pk_add_f32 {vr(ACC+k,2)}, {vr(ACC+k,2)}, {vr(BU+k,2)}")
    a(f"s_mul_i32 s{sT0}, s{sDB}, {2*96*512}")
    a(f"s_lshl_b32 s{sT1}, s{sFB}, 10")
    a(f"s_add_u32 s{sT0}, s{sT0}, s{sT1}")
    a(f"s_add_u32 s{sH0}, s{sT0}, {WS_U}")
    a(f"s_mul_i32 s{sT3}, s{sDB}, 48")
    a(f"s_add_u32 s{sT3}, s{sT3}, s{sFB}")
    a(f"s_lshl_b32 s{sT3}, s{sT3}, 6")
    a(f"s_add_u32 s{sH1}, s{sT3}, {WS_FLG}")
    k0 = -2*math.sqrt(2/math.pi)*math.log2(math.e)
    a(f"v_mov_b32 v{BU}, {hexf(k0*0.044715)}")
    a(f"v_mov_b32 v{BU+1}, {hexf(k0*0.044715)}")
    a(f"v_mov_b32 v{BU+2}, {hexf(k0)}")
    a(f"v_mov_b32 v{BU+3}, {hexf(k0)}")
    vm = VM(a)
    def w2dma(g):
        slot = g % R2
        for x in [f"s_add_u32 m0, s{sM}, {slot*2048}", "s_nop 0",
                f"buffer_load_dwordx4 v{vD0}, {sr(W2,4)}, s{sW2} offen lds",
                f"s_add_u32 m0, s{sM}, {slot*2048+1024}", f"s_nop 0",
                f"buffer_load_dwordx4 v{vD1}, {sr(W2,4)}, s{sW2} offen lds",
                f"s_add_u32 s{sW2}, s{sW2}, {16*4096}"] + ([
                f"s_add_u32 s{sK2}, s{sK2}, 1",
                f"s_cmp_eq_u32 s{sK2}, 24",
                f"s_cselect_b32 s{sR0}, {24*16*4096}, 0",
                f"s_sub_u32 s{sW2}, s{sW2}, s{sR0}"] if rot else []): a(x)
        vm.issue(g, 2)
    lds_wait(a, vCNT, t0, sT1, 4, 4, f"{name}_s1")
    RB = 64
    for p in range(1, 4):
        for k in range(4):
            a(f"ds_read_b128 {vr(RB+16*(p-1)+4*k,4)}, v{t0+p} offset:{k*1024}")
    for p in range(1, 4):
        a(f"s_waitcnt lgkmcnt({(3-p)*4})")
        for k in range(0, 16, 2):
            a(f"v_pk_add_f32 {vr(ACC+k,2)}, {vr(ACC+k,2)}, {vr(RB+16*(p-1)+k,2)}")
    lds_arrive(a, vCNT, t0, 12)
    G = RB
    for k in range(0, 16, 2): a(f"v_pk_mul_f32 {vr(G+k,2)}, {vr(ACC+k,2)}, {vr(ACC+k,2)}")
    for k in range(0, 16, 2): a(f"v_pk_fma_f32 {vr(G+k,2)}, {vr(G+k,2)}, {vr(BU,2)}, {vr(BU+2,2)}")
    for k in range(0, 16, 2): a(f"v_pk_mul_f32 {vr(G+k,2)}, {vr(G+k,2)}, {vr(ACC+k,2)}")
    for k in range(16): a(f"v_exp_f32 v{G+k}, v{G+k}")
    for k in range(0, 16, 2): a(f"v_pk_add_f32 {vr(G+k,2)}, {vr(G+k,2)}, 1.0 op_sel_hi:[1,0]")
    for k in range(16): a(f"v_rcp_f32 v{G+k}, v{G+k}")
    for k in range(0, 16, 2): a(f"v_pk_mul_f32 {vr(G+k,2)}, {vr(G+k,2)}, {vr(ACC+k,2)}")
    for k in range(8): a(f"v_cvt_pk_bf16_f32 v{G+16+k}, v{G+2*k}, v{G+2*k+1}")
    a(f"buffer_store_dwordx4 {vr(G+16,4)}, v{vU0}, {sr(WS,4)}, s{sH0} offen sc1")
    a(f"buffer_store_dwordx4 {vr(G+20,4)}, v{vU0}, {sr(WS,4)}, s{sH0} offen offset:512 sc1")
    a(f"v_mov_b32 v{t1}, 1")
    a(f"v_mov_b32 v{t2}, 0")
    for g in range(R2-1): w2dma(g)
    a(f"s_waitcnt vmcnt({2*(R2-1)})")
    a("s_mov_b64 exec, 1")
    a(f"buffer_store_dword v{t1}, v{t2}, {sr(WS,4)}, s{sH1} offen sc1")
    a("s_mov_b64 exec, -1")
    lds_wait(a, vCNT, t0, sT1, 12, 4, f"{name}_s3")
    a.stamp(3)
    a(f"s_branch {name}_G3")
    a.label(f"{name}_G2")
    for g in range(R2-1): w2dma(g)
    a.label(f"{name}_G3")
    UF = lambda s: 64 + 12*s
    def uload(g):
        U = UF(g % R2)
        for x in [f"s_add_u32 s{sT0}, s{sU}, {2*96*512}",
                f"s_add_u32 s{sT1}, s{sU}, {4*96*512}",
                f"buffer_load_dwordx4 {vr(U,4)}, v{vU0}, {sr(WS,4)}, s{sU} offen sc1",
                f"buffer_load_dwordx4 {vr(U+4,4)}, v{vU0}, {sr(WS,4)}, s{sT0} offen sc1",
                f"s_mov_b64 exec, s[72:73]",
                f"buffer_load_dwordx4 {vr(U+8,4)}, v{vU2}, {sr(WS,4)}, s{sT1} offen sc1",
                f"s_mov_b64 exec, -1",
                f"s_add_u32 s{sU}, s{sU}, 512"] + ([
                f"s_add_u32 s{sK3}, s{sK3}, 1",
                f"s_cmp_eq_u32 s{sK3}, 24",
                f"s_cselect_b32 s{sR0}, {24*512}, 0",
                f"s_sub_u32 s{sU}, s{sU}, s{sR0}"] if rot else []): a(x)
        vm.issue(g, 3)
    for k in range(6): a(f"v_mfma_f32_32x32x16_bf16 {vr(ACC+16*k,16)}, {vr(Z,4)}, {vr(Z,4)}, 0")
    a("s_mov_b32 s72, 0xffff")
    a("s_mov_b32 s73, 0xffff")
    for s_ in range(R2):
        for k in range(4): a(f"v_mov_b32 v{UF(s_)+8+k}, 0")
    for k in range(5): a(f"v_mov_b32 v{vDW[k]}, v{vDWp+k}")
    a(f"s_lshl_b32 s{sT3}, s{sST2}, 7")
    for k in range(5):
        a(f"buffer_load_dwordx2 {vr(XB+2*k,2)}, v{vXO+k}, {sr(X,4)}, s{sXO} offen")
        a(f"buffer_load_ushort v{XB+10+k}, v{vB2+k}, {sr(B2,4)}, s{sT3} offen")
    def poll(lab, voff, soff, lo, hi):
        a(f"s_mov_b32 s{sCnt}, 0x40000")
        a(f"s_mov_b32 exec_lo, {lo}")
        a(f"s_mov_b32 exec_hi, {hi}")
        a.label(f"{lab}L")
        a(f"buffer_load_dword v63, v{voff}, {sr(WS,4)}, s{soff} offen sc1")
        a(f"s_sub_u32 s{sCnt}, s{sCnt}, 1")
        a("s_waitcnt vmcnt(0)")
        a(f"v_cmp_ne_u32 vcc, 1, v63")
        a(f"s_cbranch_scc1 {lab}X")
        a.nop(4)
        a(f"s_cbranch_vccz {lab}X")
        a(f"s_sleep {slp}")
        a(f"s_branch {lab}L")
        a.label(f"{lab}X")
        a("s_mov_b64 exec, -1")
        vm.q = []
    poll(f"{name}_PU", vFL, sFL, -1, 15)
    a.stamp(4)
    a(f"s_setprio {prio_mm}")
    for g in range(R2-1): uload(g)
    def tr2(g):
        for sb in range(2):
            for aa in range(2):
                a(f"ds_read_b64_tr_b16 {vr(AF(g%2)+4*sb+2*aa,2)}, v{vQ0+sb} offset:{(g%R2)*2048+aa*1024}")
    def C(db, sb): return ACC + 16*(2*db+sb)
    def wdma(jj, tag):
        a(f"s_add_u32 m0, s{sM}, {8192 + jj*1024}")
        if jj % 5 == 0 and jj: a(f"s_add_u32 s{sWO}, s{sWO}, {32*1280}")
        else: a("s_nop 0")
        a(f"buffer_load_dwordx4 v{vDW[jj % 5]}, {sr(WO,4)}, s{sWO} offen lds")
        if jj == 12: a(f"s_add_u32 s{sWO}, s{sWO}, {16*1280}")
        vm.issue(tag, 1)
    tr2(0)
    for g in range(24):
        if g + R2 - 1 < 24:
            w2dma(g + R2 - 1); uload(g + R2 - 1)
        if 4 <= g < 17: wdma(g - 4, "wa")
        if g == 0: vm.wait(0)
        if g < 23:
            vm.wait(g+1)
            tr2(g+1)
            a("s_waitcnt lgkmcnt(4)")
        else:
            a("s_waitcnt lgkmcnt(0)")
        for db in range(3):
            for sb in range(2):
                a(f"v_mfma_f32_32x32x16_bf16 {vr(C(db,sb),16)}, {vr(UF(g%R2)+4*db,4)}, {vr(AF(g%2)+4*sb,4)}, {vr(C(db,sb),16)}")
    a.stamp(5)
    a(f"s_setprio {prio_va}")
    vRM, vRL, vOL, vOF = t0, t1, t2, t3
    a(f"v_mov_b32 v{vRM}, v146")
    a(f"v_mov_b32 v{vRL}, v147")
    a(f"v_lshlrev_b32 v{vOL}, 3, v{vI}")
    a(f"v_lshl_add_u32 v{vOL}, v{vH}, 9, v{vOL}")
    a(f"v_lshlrev_b32 v{vOF}, 11, v{vL}")
    WA = lambda k: 100 + 12*k
    def tr1(k):
        for db in range(3):
            for aa in range(2):
                if k < 4: a(f"ds_read_b64_tr_b16 {vr(WA(k)+4*db+2*aa,2)}, v{vRM} offset:{(20*k+8*aa)*160+db*64}")
                else: a(f"ds_read_b64_tr_b16 {vr(WA(k)+4*db+2*aa,2)}, v{vRL} offset:{20*aa*160+db*64}")
    for k in range(5): tr1(k)
    sO, sOL, sOF = sH0, sH1, sU
    a(f"s_lshl_b32 s{sT0}, s{sST2}, 6")
    a(f"s_lshl_b32 s{sT1}, s{sW}, 3")
    a(f"s_add_u32 s{sT0}, s{sT0}, s{sT1}")
    a(f"s_lshl_b32 s{sOL}, s{sT0}, 8")
    a(f"s_add_u32 s{sOL}, s{sOL}, {WS_OL}")
    a(f"s_lshl_b32 s{sO}, s{sT0}, 10")
    a(f"s_add_u32 s{sO}, s{sO}, {WS_O}")
    a(f"s_lshl_b32 s{sT1}, s{sT1}, 5")
    a(f"s_add_u32 s{sT1}, s{sT1}, s{sST2}")
    a(f"s_lshl_b32 s{sT1}, s{sT1}, 6")
    a(f"s_add_u32 s{sOF}, s{sT1}, {WS_OFL}")
    a("s_waitcnt lgkmcnt(0)")
    for jj in range(13): wdma(jj, "wb")
    poll(f"{name}_PO", vOF, sOF, 0xff, 0)
    a.stamp(6)
    OFr = lambda n: 40 + 8*(n % 7)
    def oload(n):
        half, k = divmod(n, 5)
        for sb in range(2):
            if k < 4:
                a(f"s_add_u32 s{sT0}, s{sO}, {(4*half + k)*1024 + sb*32768}")
                a(f"buffer_load_dwordx4 {vr(OFr(n)+4*sb,4)}, v{vBO}, {sr(WS,4)}, s{sT0} offen sc1")
                vm.issue(n, 1)
            else:
                a(f"s_add_u32 s{sT0}, s{sOL}, {4*half*256 + sb*8192}")
                a(f"buffer_load_dwordx2 {vr(OFr(n)+4*sb,2)}, v{vOL}, {sr(WS,4)}, s{sT0} offen sc1")
                a(f"buffer_load_dwordx2 {vr(OFr(n)+4*sb+2,2)}, v{vOL}, {sr(WS,4)}, s{sT0} offen offset:256 sc1")
                vm.issue(n, 2)
    for n in range(7): oload(n)
    for n in range(10):
        vm.wait(n)
        if n >= 5: a(f"s_waitcnt lgkmcnt({min(15, 6*(9-n))})")
        for db in range(3):
            for sb in range(2):
                a(f"v_mfma_f32_32x32x16_bf16 {vr(C(db,sb),16)}, {vr(WA(n%5)+4*db,4)}, {vr(OFr(n)+4*sb,4)}, {vr(C(db,sb),16)}")
        if n < 3: oload(n + 7)
        if n < 5: tr1(n)
    a(f"v_mul_u32_u24 v{t0}, 336, v{vI}")
    a(f"v_lshl_add_u32 v{t0}, v{vH}, 4, v{t0}")
    a(f"v_add_u32 v{t0}, s{sM}, v{t0}")
    XU = 40
    for k in range(5):
        a(f"v_add_u32 v{60+k}, {2*GREG}, v{vLA+k}")
    for k in range(1):
        pass
    for db in range(3):
        for sb in range(2):
            for i in range(4 if db < 2 else 2):
                a(f"ds_write_b128 v{t0}, {vr(C(db,sb)+4*i,4)} offset:{sb*32*336 + (32*db+8*i)*4}")
    lds_arrive(a, vCNT, t0, 16)
    for k in range(5):
        b = XU + 4*k
        a(f"v_lshlrev_b32 v{XB+10+k}, 16, v{XB+10+k}")
        a(f"v_lshlrev_b32 v{b}, 16, v{XB+2*k}")
        a(f"v_and_b32 v{b+1}, 0xffff0000, v{XB+2*k}")
        a(f"v_lshlrev_b32 v{b+2}, 16, v{XB+2*k+1}")
        a(f"v_and_b32 v{b+3}, 0xffff0000, v{XB+2*k+1}")
        for i in range(4): a(f"v_add_f32 v{b+i}, v{b+i}, v{XB+10+k}")
    lds_wait(a, vCNT, t0, sT1, 16, 4, f"{name}_s4")
    RB = 68
    for k in range(5):
        a(f"ds_read_b128 {vr(RB+16*k,4)}, v{vLA+k}")
        a(f"ds_read_b128 {vr(RB+16*k+4,4)}, v{vLA+k} offset:{GREG}")
        a(f"ds_read_b128 {vr(RB+16*k+8,4)}, v{60+k}")
        a(f"ds_read_b128 {vr(RB+16*k+12,4)}, v{60+k} offset:{GREG}")
    for k in range(5):
        b = XU + 4*k; r = RB + 16*k
        a(f"s_waitcnt lgkmcnt({min(15, 4*(4-k))})")
        for i in range(0, 4, 2):
            a(f"v_pk_add_f32 {vr(r+i,2)}, {vr(r+i,2)}, {vr(r+4+i,2)}")
            a(f"v_pk_add_f32 {vr(r+8+i,2)}, {vr(r+8+i,2)}, {vr(r+12+i,2)}")
            a(f"v_pk_add_f32 {vr(b+i,2)}, {vr(b+i,2)}, {vr(r+i,2)}")
            a(f"v_pk_add_f32 {vr(b+i,2)}, {vr(b+i,2)}, {vr(r+8+i,2)}")
        a(f"v_cvt_pk_bf16_f32 v{b}, v{b}, v{b+1}")
        a(f"v_cvt_pk_bf16_f32 v{b+1}, v{b+2}, v{b+3}")
        a(f"buffer_store_dwordx2 {vr(b,2)}, v{vXO+k}, {sr(OUT,4)}, s{sXO} offen")
    if diag: a("s_waitcnt vmcnt(0)")
    a.stamp(7); a.stamp(9, True)
    a.dump_stamps(10, WS, sWV, WS_DIAG)
    a.label(f"{name}_end")
    a("s_endpgm")
    return a, dict(vgpr=256, sgpr=102, lds=LDS_TOT, grid=256, block=512)
```

```python
WS_KMAX = 0x4000
WS_QN   = 0x8000
WS_QA   = 0x100000
WS_QB   = 0x300000
WS_KV   = 0x400000
WS_HT   = 0x900000
WS_U    = 0xC00000
WS_O    = 0xE00000
WS_OL   = 0x1000000
WS_OFL  = 0x90000
WS_Y    = 0x1100000
WS_FLG  = 0x80000
WS_DIAG = 0x1800000
WS_SIZE = 0x2000000
KVT = 2560
import math
QSCALE = math.log2(math.e) / math.sqrt(20.0)
import struct
def f2u(f): return struct.unpack("<I", struct.pack("<f", f))[0]
def hexf(f): return "0x%08x" % f2u(f)
```

```python
import gen, k1, k2, sys
K1D = dict(touch=3, tpos=1, stf='sc1')
def build(path, k1kw={}, k2kw={}):
    A = ("qkv_kernel",) + k1.gen_k1("qkv_kernel", **dict(K1D, **k1kw))
    B = ("attn_kernel",) + k2.gen_k2("attn_kernel", **k2kw)
    gen.assemble([A, B], path)
```

```python
from mk import *
from asmlib import *
R0 = dict(rot=False)
build("o_a.s", {}, R0)
build("o_b.s", dict(touch=0), R0)
build("o_c.s", dict(touch=0, rot=True), R0)
build("o_d.s", {}, dict(rot=False, prio_mm=1))
import gen, k1, k2
A = ("qkv_kernel",) + k1.gen_k1("qkv_kernel", **K1D)
B = ("attn_kernel",) + k2.gen_k2("attn_kernel", **R0)
gen.assemble([A, A, B], "o_e.s")
gen.assemble([A, B, A, B], "o_f.s")
```

```python
from asmlib import *
from layout import *
from k1 import srd
def gen_pf(name, which):
    a = Asm()
    a.label(name)
    a("s_cmp_ge_u32 s2, 256"); a(f"s_cbranch_scc1 {name}_end")
    sizes = {0: 2048*640*2, 8: 640*1920*2, 16: 640*640*2, 32: 2048*1536*2, 48: 2048*1536*2}
    for i, off in enumerate(which): a(f"s_load_dwordx2 s[{40+2*i}:{41+2*i}], s[0:1], {off}")
    a("v_lshlrev_b32 v1, 7, v0")
    a("s_lshl_b32 s3, s2, 15")
    a("s_waitcnt lgkmcnt(0)")
    for i, off in enumerate(which):
        srd(a, 8, 40+2*i, sizes[off])
        a(f"buffer_load_dword v{2+i}, v1, s[8:11], s3 offen")
    a("s_waitcnt vmcnt(0)")
    a.label(f"{name}_end"); a("s_endpgm")
    return a, dict(vgpr=32, sgpr=64, lds=0, grid=256, block=256)
```

```python
from mk import *
from asmlib import *
import gen, k1, k2, pfk
R0 = dict(rot=False)
A = ("qkv_kernel",) + k1.gen_k1("qkv_kernel", **K1D)
B = ("attn_kernel",) + k2.gen_k2("attn_kernel", **R0)
P = ("pf_kernel",) + pfk.gen_pf("pf_kernel", [0, 8, 16, 32, 48])
P1 = ("pf_kernel",) + pfk.gen_pf("pf_kernel", [0, 8])
P2 = ("pf_kernel",) + pfk.gen_pf("pf_kernel", [16, 32, 48])
e = Asm(); e.label("empty_kernel"); e("s_endpgm")
E = ("empty_kernel", e, dict(vgpr=32, sgpr=16, lds=0, grid=256, block=256))
gen.assemble([A, B], "o_a.s")
gen.assemble([P, A, B], "o_b.s")
gen.assemble([P1, A, B], "o_c.s")
gen.assemble([P2, A, B], "o_d.s")
gen.assemble([E, A, B], "o_e.s")
gen.assemble([P, P, A, B], "o_f.s")
```

```python
from asmlib import *
from layout import *
from k1 import srd
def gen_pf(name, which):
    a = Asm()
    a.label(name)
    a("s_cmp_ge_u32 s2, 256"); a(f"s_cbranch_scc1 {name}_end")
    sizes = {0: 2048*640*2, 8: 640*1920*2, 16: 640*640*2, 32: 2048*1536*2, 48: 2048*1536*2}
    for i, off in enumerate(which): a(f"s_load_dwordx2 s[{40+2*i}:{41+2*i}], s[0:1], {off}")
    a("v_lshlrev_b32 v1, 7, v0")
    a("s_lshl_b32 s3, s2, 15")
    a("s_waitcnt lgkmcnt(0)")
    for i, off in enumerate(which):
        srd(a, 8, 40+2*i, sizes[off])
        a(f"buffer_load_dword v{2+i}, v1, s[8:11], s3 offen")
    a("s_waitcnt vmcnt(0)")
    a.label(f"{name}_end"); a("s_endpgm")
    return a, dict(vgpr=32, sgpr=64, lds=0, grid=256, block=256)
def gen_pfx(name, mode):
    a = Asm()
    a.label(name)
    a("s_cmp_ge_u32 s2, 256"); a(f"s_cbranch_scc1 {name}_end")
    a("s_load_dwordx2 s[40:41], s[0:1], 80")
    a("s_load_dwordx2 s[42:43], s[0:1], 64")
    a("v_lshlrev_b32 v1, 7, v0")
    a("s_lshl_b32 s3, s2, 15")
    a("s_waitcnt lgkmcnt(0)")
    if mode == "ws":
        srd(a, 8, 40, WS_SIZE)
        for k in range(3):
            a(f"buffer_load_dword v{2+k}, v1, s[8:11], s3 offen")
            a("s_add_u32 s3, s3, 0x800000")
    elif mode == "wstlb":
        srd(a, 8, 40, WS_SIZE)
        a("v_lshlrev_b32 v1, 16, v0")
        a("buffer_load_dword v2, v1, s[8:11], 0 offen")
        srd(a, 12, 42, 2048*640*2)
        a("buffer_load_dword v3, v1, s[12:15], 0 offen")
    elif mode == "code":
        a("s_getpc_b64 s[44:45]")
        a("v_lshlrev_b32 v1, 6, v0")
        a("v_mov_b32 v2, 0")
        for k in range(2):
            a(f"global_load_dword v{4+k}, v1, s[44:45]")
            a("v_add_u32 v1, 16384, v1")
    a("s_waitcnt vmcnt(0)")
    a.label(f"{name}_end"); a("s_endpgm")
    return a, dict(vgpr=32, sgpr=64, lds=0, grid=256, block=256)
```

```python
from mk import *
from asmlib import *
import gen, k1, k2, pfk
R0 = dict(rot=False)
A = ("qkv_kernel",) + k1.gen_k1("qkv_kernel", **K1D)
B = ("attn_kernel",) + k2.gen_k2("attn_kernel", **R0)
gen.assemble([A, B], "o_a.s")
gen.assemble([("pf_kernel",) + pfk.gen_pfx("pf_kernel", "ws"), A, B], "o_b.s")
gen.assemble([("pf_kernel",) + pfk.gen_pfx("pf_kernel", "wstlb"), A, B], "o_c.s")
gen.assemble([("pf_kernel",) + pfk.gen_pfx("pf_kernel", "code"), A, B], "o_d.s")
e = Asm(); e.label("empty_kernel"); e("s_endpgm")
gen.assemble([("empty_kernel", e, dict(vgpr=256, sgpr=102, lds=159808, grid=256, block=512)), A, B], "o_e.s")
```

```python
import re
class Asm:
    def __init__(self):
        self.lines = []
    def __call__(self, s):
        for l in s.split("\n"):
            l = l.strip()
            if l: self.lines.append(l)
    def label(self, n): self.lines.append(n + ":")
    def nop(self, n):
        while n > 0:
            k = min(n, 16); self.lines.append(f"s_nop {k-1}"); n -= k
    diag = False
    rt = False
    def rstamp(self, i):
        if self.diag and self.rt: self.lines.append(f"s_memrealtime s[{80+2*i}:{81+2*i}]")
    def stamp(self, i, real=False):
        if self.diag and (not self.rt or real):
            self.lines.append(f"s_mem{'real' if real else ''}time s[{80+2*i}:{81+2*i}]")
    def dump_stamps(self, n, ws_srd, sW, base, wave=None):
        if not self.diag: return
        L = self.lines.append
        L("s_waitcnt lgkmcnt(0)")
        L("s_mov_b64 exec, 1")
        L(f"s_lshl_b32 s100, s2, 4")
        L(f"s_add_u32 s100, s100, s{sW}")
        L(f"s_lshl_b32 s100, s100, 6")
        L(f"s_add_u32 s100, s100, {base}")
        L("v_mov_b32 v0, 0")
        for i in range(n):
            L(f"v_mov_b32 v1, s{80+2*i}")
            L(f"buffer_store_dword v1, v0, s[{ws_srd}:{ws_srd+3}], s100 offen offset:{4*i}")
        L("s_waitcnt vmcnt(0)")
    def text(self):
        return "\n".join((l if l.endswith(":") or l.startswith(".") else "    " + l) for l in self.lines) + "\n"

def vr(a, n=1): return f"v{a}" if n == 1 else f"v[{a}:{a+n-1}]"
def sr(a, n=1): return f"s{a}" if n == 1 else f"s[{a}:{a+n-1}]"

TRANS = ("v_exp_f32", "v_log_f32", "v_rcp_f32", "v_rsq_f32", "v_sqrt_f32", "v_sin_f32", "v_cos_f32")
def _regs(tok):
    tok = tok.strip().lstrip("-")
    m = re.fullmatch(r"(?:abs\()?\|?([vsa])(\d+)\|?\)?", tok)
    if m: return [(m.group(1), int(m.group(2)))]
    m = re.fullmatch(r"([vsa])\[(\d+):(\d+)\]", tok)
    if m: return [(m.group(1), i) for i in range(int(m.group(2)), int(m.group(3))+1)]
    if tok == "vcc": return [("s", 106), ("s", 107)]
    if tok == "m0": return [("s", 124)]
    if tok == "exec": return [("s", 126), ("s", 127)]
    if tok in ("exec_lo",): return [("s", 126)]
    if tok in ("exec_hi",): return [("s", 127)]
    return []
def parse(line):
    line = line.split(";")[0].strip()
    if not line or line.endswith(":") or line.startswith("."): return None
    parts = line.split(None, 1)
    op = parts[0]; rest = parts[1] if len(parts) > 1 else ""
    ops = []; depth = 0; cur = ""
    for ch in rest:
        if ch == "[": depth += 1
        if ch == "]": depth -= 1
        if ch == "," and depth == 0: ops.append(cur.strip()); cur = ""
        else: cur += ch
    if cur.strip(): ops.append(cur.strip())
    mods = ""
    if ops:
        last = ops[-1].split(None, 1)
        if len(last) > 1: ops[-1] = last[0]; mods = last[1]
    return op, ops, mods
def classify(op, ops, mods):
    R = lambda i: _regs(ops[i]) if i < len(ops) else []
    d = dict(op=op, w=[], r=[], kind="other", passes=0, srcC=[], srcAB=[], dpp=("row_" in mods or "quad_perm" in mods or op.endswith("_dpp")), wide=False, lds=(" lds" in " " + mods))
    if op.startswith("v_mfma"):
        d["kind"] = "mfma"; d["w"] = R(0); d["srcAB"] = R(1) + R(2); d["srcC"] = R(3); d["r"] = d["srcAB"] + d["srcC"]
        d["passes"] = 8 if "32x32" in op else 4
    elif op.startswith("v_cmp"):
        d["kind"] = "valu"; d["w"] = R(0); d["r"] = sum((R(i) for i in range(1, len(ops))), [])
    elif op.startswith("v_readfirstlane") or op.startswith("v_readlane"):
        d["kind"] = "valu"; d["w"] = R(0); d["r"] = sum((R(i) for i in range(1, len(ops))), []); d["rl"] = True
    elif op.startswith("v_permlane"):
        d["kind"] = "valu"; d["w"] = R(0) + R(1); d["r"] = R(0) + R(1); d["perm"] = True
    elif op.startswith("v_"):
        d["kind"] = "valu"; d["w"] = R(0); d["r"] = sum((R(i) for i in range(1, len(ops))), [])
        if op.startswith(("v_fmac", "v_dot2c", "v_pk_fmac")) or "UNUSED_PRESERVE" in mods: d["r"] += R(0)
        if op.startswith(("v_add_co", "v_sub_co", "v_addc_co")): d["w"] += R(1)
        if d["dpp"]: d["r"] += R(0)
        if op.replace("_e32", "").replace("_e64", "") in TRANS: d["trans"] = True
    elif op.startswith(("buffer_load", "global_load")):
        d["kind"] = "vmem"
        if d["lds"]: d["r"] = sum((R(i) for i in range(len(ops))), []) + [("s", 124)]
        else: d["w"] = R(0); d["r"] = sum((R(i) for i in range(1, len(ops))), [])
    elif op.startswith(("buffer_store", "global_store", "buffer_atomic", "global_atomic")):
        d["kind"] = "vmem"; d["r"] = sum((R(i) for i in range(len(ops))), [])
        if op.endswith(("x3", "x4")):
            d["wide"] = True; d["data"] = R(0) if op.startswith("buffer") else R(1)
    elif op.startswith("ds_read") or op.startswith("ds_bperm") or op.startswith("ds_swiz"):
        d["kind"] = "ds"; d["w"] = R(0); d["r"] = sum((R(i) for i in range(1, len(ops))), [])
    elif op.startswith("ds_"):
        d["kind"] = "ds"; d["r"] = sum((R(i) for i in range(len(ops))), [])
    elif op.startswith("s_nop"):
        d["kind"] = "nop"; d["n"] = int(ops[0], 0) + 1
    elif op.startswith("s_"):
        d["kind"] = "salu"
        if op.startswith(("s_cmp", "s_waitcnt", "s_barrier", "s_cbranch", "s_branch", "s_setprio", "s_sleep", "s_endpgm", "s_bitcmp")):
            d["r"] = sum((R(i) for i in range(len(ops))), [])
        else:
            d["w"] = R(0); d["r"] = sum((R(i) for i in range(1, len(ops))), [])
            if "saveexec" in op: d["w"] += [("s", 126), ("s", 127)]
    return d
def check_hazards(lines, verbose=True):
    hist = []
    pos = 0; errs = []
    for ln in lines:
        p = parse(ln)
        if p is None: continue
        d = classify(*p)
        Rr = set(d["r"]); W = set(d["w"])
        for (q, e, t) in reversed(hist):
            dist = pos - q - 1 + 0
            if dist > 20: break
            need = 0
            ew = set(e["w"])
            if e["kind"] == "valu":
                vw = {x for x in ew if x[0] == "v"}; sw = {x for x in ew if x[0] == "s"}
                if d["kind"] == "mfma" and (vw & Rr): need = max(need, 2)
                if d["kind"] == "valu" and d["dpp"] and (vw & Rr): need = max(need, 2)
                if d.get("perm") and (vw & Rr): need = max(need, 2)
                if d.get("rl") and (vw & Rr): need = max(need, 1)
                if e.get("trans") and d["kind"] == "valu" and not d.get("trans") and (vw & Rr): need = max(need, 1)
                if d["kind"] == "valu" and (sw & Rr): need = max(need, 2)
                if d["kind"] == "valu" and d["op"].startswith(("v_cndmask", "v_addc")) and (sw & {("s",106),("s",107)}) and "vcc" in ln: need = max(need, 2)
                if d["kind"] == "vmem" and (sw & Rr): need = max(need, 5)
                if d["kind"] == "salu" and (sw & Rr): need = max(need, 1)
            if e["kind"] == "mfma":
                big = e["passes"] == 8
                if d["kind"] == "mfma":
                    if ew & set(d["srcAB"]): need = max(need, 12 if big else 8)
                    c = set(d["srcC"])
                    if (ew & c) and not (ew == c and e["passes"] == d["passes"]): need = max(need, 10 if big else 6)
                    if (ew & W) and not (ew == c and W == c) and not (ew & c): need = max(need, 0)
                elif d["kind"] in ("valu", "vmem", "ds"):
                    if ew & (Rr | W): need = max(need, 12 if big else 8)
                    if d["kind"] == "valu" and (set(e["srcC"]) & W): need = max(need, 7 if big else 3)
            if e["kind"] == "salu" and ("s", 124) in ew and d["kind"] == "vmem" and d["lds"]: need = max(need, 1)
            if e.get("wide") and d["kind"] == "valu" and (set(e["data"]) & W): need = max(need, 2)
            if e.get("wide") and d["kind"] in ("ds", "vmem") and (set(e["data"]) & W): need = max(need, 1)
            if need > dist:
                errs.append(f"hazard: need {need} have {dist}: [{t}] -> [{ln.strip()}]")
        hist.append((pos, d, ln.strip()))
        pos += d["n"] if d["kind"] == "nop" else 1
        if len(hist) > 40: hist.pop(0)
    if verbose:
        for e in errs[:50]: print(e)
    return errs

class VM:
    def __init__(self, a): self.a = a; self.q = []
    def issue(self, tag, n=1): self.q += [tag]*n
    def wait(self, tag):
        idx = max(i for i, t in enumerate(self.q) if t == tag)
        n = len(self.q) - 1 - idx
        assert n <= 63
        self.a(f"s_waitcnt vmcnt({n})")
        self.q = self.q[idx+1:]
    def waitall(self): self.a("s_waitcnt vmcnt(0)"); self.q = []
```

```python
from asmlib import *
from layout import *

def srd(a, d, base, size):
    a(f"s_mov_b32 s{d}, s{base}")
    a(f"s_and_b32 s{d+1}, s{base+1}, 0xffff")
    a(f"s_mov_b32 s{d+2}, {size}")
    a(f"s_mov_b32 s{d+3}, 0x20000")

def allreduce32(a, v, t):
    for ror in (8, 4, 2, 1):
        a.nop(2)
        a(f"v_add_f32_dpp v{v}, v{v}, v{v} row_ror:{ror} row_mask:0xf bank_mask:0xf")
    a(f"v_mov_b32 v{t}, v{v}")
    a.nop(2)
    a(f"v_permlane16_swap_b32 v{v}, v{t}")
    a(f"v_add_f32 v{v}, v{v}, v{t}")

def bf16r(a, v):
    a(f"v_cvt_pk_bf16_f32 v{v}, v{v}, v{v}")
    a(f"v_and_b32 v{v}, 0xffff0000, v{v}")

LDS_X = 65536
LDS_MISC = 131072
LDS_CS = LDS_MISC + 10240
LDS_ST = LDS_CS + 512
K1_LDS = LDS_ST + 1024


WS_STATS = 0
def gen_k1(name, diag=False, rot=False, pf=0, touch=0, dg2=False, sfirst=True, fl='atom', flat=3, tpos=0, hpos=2, stf='', lv=0, per0=None, per2=None):
    a = Asm(); a.diag = diag
    sW, sMT, sNT = 3, 10, 11
    X, Wd, WS, DBG = 12, 16, 20, 44
    sXo, sWo, sMX, sMW = 24, 25, 26, 27
    sT0, sT1, sT2, sT3 = 28, 29, 30, 31
    sCol, sKS, sCnt, sWV = 32, 35, 36, 37
    vL = 1
    vXA = 2
    vWA = 6
    vXR = 10
    vWR = 14
    vWO = 18
    vSEL = 20
    vCS = 24
    vSQ = 32
    vF = 48
    vACC = 96
    vT = 160
    t0, t1, t2, t3 = vT+20, vT+21, vT+22, vT+23
    vI, vH = vT+24, vT+25
    s0, s1, s2_ = vT+50, vT+52, vT+54
    LDS_S8 = LDS_ST + 1024
    a.label(name)
    a(f"s_cmp_ge_u32 s2, 256")
    a(f"s_cbranch_scc1 {name}_end")
    a.stamp(0); a.stamp(8, True)
    a("s_load_dwordx4 s[4:7], s[0:1], 0")
    a("s_load_dwordx4 s[40:43], s[0:1], 72")
    a("v_lshrrev_b32 v2, 6, v0")
    a(f"v_and_b32 v{vL}, 63, v0")
    a(f"v_readfirstlane_b32 s{sWV}, v2")
    a(f"s_and_b32 s{sT0}, s2, 7")
    a(f"s_lshr_b32 s{sT1}, s2, 3")
    a(f"s_and_b32 s{sW}, s{sWV}, 3")
    a(f"s_and_b32 s{sT2}, s{sT0}, 3")
    a(f"s_lshl_b32 s{sT2}, s{sT2}, 2")
    a(f"s_and_b32 s{sT3}, s{sT1}, 3")
    a(f"s_add_u32 s{sMT}, s{sT2}, s{sT3}")
    a(f"s_lshr_b32 s{sT0}, s{sT0}, 2")
    a(f"s_lshl_b32 s{sT0}, s{sT0}, 3")
    a(f"s_lshr_b32 s{sT1}, s{sT1}, 2")
    a(f"s_add_u32 s{sNT}, s{sT0}, s{sT1}")
    a(f"s_lshl_b32 s{sMX}, s{sW}, 14")
    a(f"s_add_u32 s{sMX}, s{sMX}, {LDS_X}")
    a(f"v_and_b32 v{vI}, 31, v{vL}")
    a(f"v_lshrrev_b32 v{vH}, 5, v{vL}")
    a(f"s_cmp_lt_u32 s{sWV}, 4")
    a(f"s_cbranch_scc1 {name}_C")
    if rot:
        a(f"s_mul_i32 s{sKS}, s{sT3}, 3")
        a(f"s_add_u32 s{sKS}, s{sKS}, s{sT1}")
        a(f"s_sub_u32 s{sT2}, s{sKS}, 10")
        a(f"s_cmp_ge_u32 s{sKS}, 10")
        a(f"s_cselect_b32 s{sKS}, s{sT2}, s{sKS}")
    a(f"s_mul_i32 s{sT0}, s{sNT}, 240")
    a(f"s_lshl_b32 s{sT1}, s{sNT}, 8")
    a(f"s_add_u32 s{sT1}, s{sT1}, {2560 - 11*256}")
    a(f"s_cmp_lt_u32 s{sNT}, 11")
    a(f"s_cselect_b32 s{sCol}, s{sT0}, s{sT1}")
    a(f"s_lshl_b32 s{sT0}, s{sMT}, 7")
    a(f"s_lshl_b32 s{sT2}, s{sW}, 5")
    a(f"s_add_u32 s{sT0}, s{sT0}, s{sT2}")
    a(f"s_mul_i32 s{sXo}, s{sT0}, 1280")
    sSTo = 38
    a(f"s_lshl_b32 s{sSTo}, s{sT0}, 3")
    a(f"s_mul_i32 s{sWo}, s{sW}, {16*3840}")
    a(f"s_add_u32 s{sWo}, s{sWo}, s{sCol}")
    if rot:
        a(f"s_lshl_b32 s{sT2}, s{sKS}, 7")
        a(f"s_add_u32 s{sXo}, s{sXo}, s{sT2}")
        a(f"s_mul_i32 s{sT2}, s{sKS}, {64*3840}")
        a(f"s_add_u32 s{sWo}, s{sWo}, s{sT2}")
    a(f"s_lshl_b32 s{sMW}, s{sW}, 12")
    a(f"v_lshrrev_b32 v{t0}, 3, v{vL}")
    a(f"v_lshrrev_b32 v{t1}, 4, v{vL}")
    a(f"v_and_b32 v{t2}, 7, v{vL}")
    a(f"v_mul_u32_u24 v{t0}, 1280, v{t0}")
    for j in range(4):
        a(f"v_xor_b32 v{t3}, v{t2}, v{t1}")
        if j % 2: a(f"v_xor_b32 v{t3}, 4, v{t3}")
        a(f"v_lshl_add_u32 v{vXA+j}, v{t3}, 4, v{t0}")
        if j: a(f"v_add_u32 v{vXA+j}, {8*j*1280}, v{vXA+j}")
    a(f"v_and_b32 v{t2}, 15, v{vL}")
    a(f"v_lshlrev_b32 v{t3}, 2, v{t1}")
    a(f"v_xor_b32 v{t2}, v{t2}, v{t3}")
    a(f"v_mul_u32_u24 v{t0}, 3840, v{t1}")
    a(f"v_lshl_add_u32 v{vWA}, v{t2}, 4, v{t0}")
    for j in range(1, 4):
        a(f"v_add_u32 v{vWA+j}, {4*j*3840}, v{vWA}")
    a("s_waitcnt lgkmcnt(0)")
    if not dg2: a.stamp(1)
    srd(a, X, 4, 2048*640*2)
    srd(a, Wd, 6, 640*1920*2)
    vm = VM(a)
    def dma(stage):
        buf = stage % 4
        for j in range(4):
            a(f"s_add_u32 m0, s{sMW}, {buf*16384 + j*1024}\ns_nop 0\nbuffer_load_dwordx4 v{vWA+j}, {sr(Wd,4)}, s{sWo} offen lds")
            a(f"s_add_u32 m0, s{sMX}, {buf*4096 + j*1024}\ns_nop 0\nbuffer_load_dwordx4 v{vXA+j}, {sr(X,4)}, s{sXo} offen lds")
        a(f"s_add_u32 s{sXo}, s{sXo}, 128\ns_add_u32 s{sWo}, s{sWo}, {64*3840}")
        if rot:
            a(f"s_add_u32 s{sKS}, s{sKS}, 1")
            a(f"s_cmp_eq_u32 s{sKS}, 10")
            a(f"s_cselect_b32 s{sT0}, 1280, 0")
            a(f"s_cselect_b32 s{sT1}, {640*3840}, 0")
            a(f"s_sub_u32 s{sXo}, s{sXo}, s{sT0}")
            a(f"s_sub_u32 s{sWo}, s{sWo}, s{sT1}")
        vm.issue(stage, 8)
    if touch == 3:
        TS = 52; sTo = 56; vTo = vT + 60
        a(f"s_lshr_b32 s{sT0}, s2, 3")
        a(f"s_cmp_lt_u32 s{sT0}, 8")
        for k in range(3): a(f"s_cselect_b32 s{TS+k}, s{X+k}, s{Wd+k}")
        a(f"s_mov_b32 s{TS+3}, 0x20000")
        a(f"s_movk_i32 s57, 128")
        a(f"s_cselect_b32 s57, s57, {64*3840}")
        a(f"s_cselect_b64 vcc, -1, 0")
        a(f"s_and_b32 s{sT1}, s2, 3")
        a(f"s_lshl_b32 s{sT1}, s{sT1}, 3")
        a(f"s_add_u32 s{sT1}, s{sT1}, s{sT0}")
        a(f"s_mul_i32 s{sT1}, s{sT1}, {64*1280}")
        a(f"s_sub_u32 s{sT2}, s{sT0}, 8")
        a(f"s_mul_i32 s{sT2}, s{sT2}, {4*3840}")
        a(f"s_bfe_u32 s{sT3}, s2, 0x10002")
        a(f"s_mul_i32 s{sT3}, s{sT3}, 1920")
        a(f"s_add_u32 s{sT2}, s{sT2}, s{sT3}")
        a(f"s_cmp_lt_u32 s{sT0}, 24")
        a(f"s_cselect_b32 s{sT2}, s{sT2}, 0x10000000")
        a(f"s_cmp_lt_u32 s{sT0}, 8")
        a(f"s_cselect_b32 s{sTo}, s{sT1}, s{sT2}")
        a(f"s_add_u32 s{sT0}, s{sW}, 2")
        a(f"s_mul_i32 s{sT0}, s{sT0}, s57")
        a(f"s_add_u32 s{sTo}, s{sTo}, s{sT0}")
        a(f"s_lshl_b32 s57, s57, 2")
        a(f"v_mul_u32_u24 v{vTo}, 1280, v{vL}")
        a(f"v_and_b32 v{vTo+1}, 15, v{vL}")
        a(f"v_lshlrev_b32 v{vTo+1}, 7, v{vTo+1}")
        a(f"v_add_u32 v{vTo+1}, v{vTo+1}, v{t0}")
        a(f"v_cndmask_b32 v{vTo}, v{vTo+1}, v{vTo}, vcc")
        def tch(k):
            a(f"buffer_load_dword v{vTo+2+k}, v{vTo}, {sr(TS,4)}, s{sTo} offen")
            a(f"s_add_u32 s{sTo}, s{sTo}, s57")
            vm.issue("t", 1)
    dma(0)
    if touch == 3 and tpos == 0: tch(0)
    dma(1)
    if touch == 3 and tpos == 1: tch(0)
    if not dg2: a.stamp(2)
    srd(a, WS, 42, WS_SIZE)
    srd(a, DBG, 40, 256)
    E = vT + 30
    a(f"v_bfe_u32 v{t0}, v{vL}, 2, 2")
    a(f"v_mul_u32_u24 v{t0}, 1280, v{t0}")
    a(f"v_lshrrev_b32 v{t1}, 4, v{vL}")
    a(f"v_lshl_add_u32 v{t0}, v{t1}, 5, v{t0}")
    a(f"v_and_b32 v{t1}, 3, v{vL}")
    a(f"v_lshl_add_u32 v{t0}, v{t1}, 3, v{t0}")
    a(f"s_lshl_b32 s{sT0}, s{sW}, 7")
    a(f"s_add_u32 s{sT0}, s{sT0}, {LDS_MISC}")
    a(f"v_add_u32 v{t0}, s{sT0}, v{t0}")
    a(f"s_cmp_lt_u32 s{sW}, 2")
    a(f"s_cselect_b32 s{sT3}, 8, 4")
    a(f"s_lshl_b32 s{sT0}, s{sT3}, 7")
    a(f"v_add_u32 v{t1}, s{sT0}, v{t0}")
    a(f"v_lshlrev_b32 v{t2}, 17, v{vH}")
    a(f"v_lshl_add_u32 v{t2}, v{vI}, 4, v{t2}")
    a(f"v_lshlrev_b32 v{t3}, 3, v{vL}")
    sG8, sH0, sH1, sH2 = 33, 34, 39, 48
    a(f"s_lshl_b32 s{sG8}, s{sMT}, 4")
    a(f"s_add_u32 s{sG8}, s{sG8}, s{sNT}")
    a(f"s_lshl_b32 s{sH0}, s{sG8}, 9")
    a(f"s_lshl_b32 s{sT1}, s{sW}, 18")
    a(f"s_add_u32 s{sH0}, s{sH0}, s{sT1}")
    a(f"s_add_u32 s{sH0}, s{sH0}, {WS_HT}")
    a(f"s_add_u32 s{sH1}, s{sH0}, {4<<18}")
    a(f"s_lshl_b32 s{sH2}, s{sT3}, 18")
    a(f"s_add_u32 s{sH2}, s{sH2}, s{sH0}")
    vm.wait(0)
    a("s_barrier")
    if dg2: a.stamp(1)
    if not dg2: a.stamp(3)
    a(f"ds_read_b64_tr_b16 {vr(E,2)}, v{t0}")
    a(f"ds_read_b64_tr_b16 {vr(E+2,2)}, v{t0} offset:5120")
    a(f"ds_read_b64_tr_b16 {vr(E+4,2)}, v{t0} offset:512")
    a(f"ds_read_b64_tr_b16 {vr(E+6,2)}, v{t0} offset:{512+5120}")
    a(f"ds_read_b64_tr_b16 {vr(E+8,2)}, v{t1}")
    a(f"ds_read_b64_tr_b16 {vr(E+10,2)}, v{t1} offset:5120")
    a(f"v_add_u32 v{E+14}, {LDS_S8}, v{t3}")
    a(f"ds_read_b64 {vr(E+12,2)}, v{E+14}")
    if touch == 3: tch(1)
    dma(2)
    a(f"s_lshl_b32 s{sT2}, s{sG8}, 6")
    a(f"s_cmp_eq_u32 s{sW}, 0")
    a(f"s_cselect_b32 s{sT2}, s{sT2}, {WS_SIZE}")
    vm.wait(1)
    a("s_waitcnt lgkmcnt(0)")
    a("s_barrier")
    if dg2: a.stamp(2)
    a("s_mov_b64 exec, 0xff")
    a(f"buffer_store_dwordx2 {vr(E+12,2)}, v{t3}, {sr(WS,4)}, s{sT2} offen sc1")
    a("s_mov_b64 exec, -1")
    vm.issue("st", 1)
    def flag():
        a(f"v_mov_b32 v{E+16}, 1")
        a(f"s_cmp_eq_u32 s{sW}, 0")
        if fl == "byte":
            a(f"s_cselect_b32 s{sT2}, s{sG8}, 256")
        else:
            a(f"s_lshl_b32 s{sT0}, s{sMT}, 4")
            a(f"s_cselect_b32 s{sT2}, s{sT0}, 256")
            a.lines[-2], a.lines[-3] = a.lines[-3], a.lines[-2]
        a("s_mov_b64 exec, 1")
        if fl == "byte": a(f"buffer_store_byte v{E+16}, v{E+17}, {sr(DBG,4)}, s{sT2} offen sc1")
        else: a(f"buffer_atomic_add v{E+16}, v{E+17}, {sr(DBG,4)}, s{sT2} offen sc1")
        a("s_mov_b64 exec, -1")
        vm.issue("fl", 1)
    a(f"v_mov_b32 v{E+17}, 0")
    for s in range(2, 9):
        dma(s+1)
        if s == hpos:
            a(f"buffer_store_dwordx4 {vr(E,4)}, v{t2}, {sr(WS,4)}, s{sH0} offen {stf}")
            a(f"buffer_store_dwordx4 {vr(E+4,4)}, v{t2}, {sr(WS,4)}, s{sH1} offen {stf}")
            a(f"buffer_store_dwordx4 {vr(E+8,4)}, v{t2}, {sr(WS,4)}, s{sH2} offen {stf}")
            vm.issue("h", 3)
        if s == 8:
            a(f"s_lshl_b32 s{sT0}, s2, 9")
            a(f"s_lshl_b32 s{sT1}, s{sW}, 7")
            a(f"s_add_u32 s{sT0}, s{sT0}, s{sT1}")
            a(f"s_add_u32 s{sT0}, s{sT0}, {WS_FLG}")
            a(f"v_lshlrev_b32 v{t0}, 2, v{vI}")
            a(f"buffer_store_dword v{E+17}, v{t0}, {sr(WS,4)}, s{sT0} offen")
            vm.issue("z", 1)
            a(f"s_lshl_b32 s{sT2}, s{sMT}, 4")
            a(f"s_mov_b32 s{sT3}, {0x01010101 if fl == 'byte' else 16}")
            a(f"buffer_load_dwordx4 {vr(E+20,4)}, v{E+17}, {sr(DBG,4)}, s{sT2} offen sc1")
            vm.issue("p", 1)
        vm.wait(s)
        if s == flat: flag()
        a("s_barrier")
        if dg2 and s in (2, 3, 4, 6): a.stamp({2: 3, 3: 4, 4: 5, 6: 6}[s])
    if not dg2: a.stamp(4)
    a(f"s_mov_b32 s{sCnt}, 0x40000")
    a.label(f"{name}_PL")
    a("s_waitcnt vmcnt(0)")
    if fl == "byte":
        a(f"v_and_b32 v{E+20}, v{E+20}, v{E+21}")
        a(f"v_and_b32 v{E+22}, v{E+22}, v{E+23}")
        a(f"v_and_b32 v{E+20}, v{E+20}, v{E+22}")
    a(f"s_sub_u32 s{sCnt}, s{sCnt}, 1")
    a(f"v_readfirstlane_b32 s{sT0}, v{E+20}")
    a(f"s_cbranch_scc1 {name}_PX")
    a(f"s_cmp_eq_u32 s{sT0}, s{sT3}")
    a(f"s_cbranch_scc1 {name}_PX")
    a("s_sleep 2")
    a(f"buffer_load_dwordx4 {vr(E+20,4)}, v{E+17}, {sr(DBG,4)}, s{sT2} offen sc1")
    a(f"s_branch {name}_PL")
    a.label(f"{name}_PX")
    a(f"v_lshlrev_b32 v{t3}, 3, v{vI}")
    a(f"buffer_load_dwordx2 {vr(E+8,2)}, v{t3}, {sr(WS,4)}, s{sSTo} offen sc1")
    if not dg2: a.stamp(5)
    a("s_barrier")
    if dg2: a.stamp(7)
    a(f"s_lshl_b32 s{sT0}, s{sW}, 8")
    a(f"s_add_u32 s{sT0}, s{sT0}, {LDS_ST}")
    a(f"v_lshl_add_u32 v{t0}, v{vI}, 2, s{sT0}")
    a("s_waitcnt vmcnt(0)")
    a(f"ds_write2_b32 v{t0}, v{E+8}, v{E+9} offset0:0 offset1:32")
    a("s_waitcnt lgkmcnt(0)")
    if not dg2: a.stamp(6)
    a("s_barrier")
    if not dg2: a.stamp(7)
    a.stamp(9, True)
    a.dump_stamps(10, WS, sWV, WS_DIAG)
    a("s_endpgm")
    a.label(f"{name}_C")
    vS = vT + 4
    a(f"v_mul_u32_u24 v{vT+1}, 1280, v{vH}")
    a(f"v_lshl_add_u32 v{vT}, v{vI}, 3, v{vT+1}")
    a(f"s_lshl_b32 s{sT0}, s{sMT}, 7")
    a(f"s_lshl_b32 s{sT1}, s{sNT}, 3")
    a(f"s_add_u32 s{sT1}, s{sT1}, s{sT0}")
    a(f"s_lshl_b32 s{sT2}, s{sW}, 1")
    a(f"s_add_u32 s{sT1}, s{sT1}, s{sT2}")
    a(f"s_mul_i32 s{sT1}, s{sT1}, 1280")
    a("s_waitcnt lgkmcnt(0)")
    a.stamp(1)
    srd(a, X, 4, 2048*640*2)
    for i in range(5):
        a(f"buffer_load_dwordx2 {vr(vS+2*i,2)}, v{vT}, {sr(X,4)}, s{sT1} offen offset:{256*i}")
    NT = 0
    if touch in (1, 2):
        srd(a, Wd, 6, 640*1920*2)
        a(f"s_lshr_b32 s{sT0}, s2, 3")
        a(f"s_lshl_b32 s{sT0}, s{sT0}, 2")
        a(f"s_add_u32 s{sT0}, s{sT0}, s{sW}")
        a(f"s_lshl_b32 s{sT0}, s{sT0}, 2")
        a(f"s_add_u32 s{sT1}, s{sT0}, 128")
        a(f"s_mul_i32 s{sT1}, s{sT1}, 3840")
        a(f"s_bfe_u32 s{sT2}, s2, 0x10002")
        a(f"s_mul_i32 s{sT2}, s{sT2}, 1920")
        a(f"s_add_u32 s{sT1}, s{sT1}, s{sT2}")
        a(f"s_and_b32 s{sT2}, s2, 3")
        a(f"s_lshl_b32 s{sT2}, s{sT2}, 9")
        a(f"s_add_u32 s{sT0}, s{sT0}, s{sT2}")
        a(f"s_mul_i32 s{sT0}, s{sT0}, 1280")
        a(f"v_lshrrev_b32 v{t0}, 4, v{vL}")
        a(f"v_and_b32 v{t1}, 15, v{vL}")
        a(f"v_lshlrev_b32 v{t1}, 7, v{t1}")
        a(f"v_mul_u32_u24 v{t2}, 3840, v{t0}")
        a(f"v_add_u32 v{t2}, v{t2}, v{t1}")
        a(f"v_mul_u32_u24 v{t0}, 1280, v{t0}")
        a(f"v_add_u32 v{t0}, v{t0}, v{t1}")
        a(f"v_mov_b32 v{vSQ+2}, v{t2}")
        a(f"v_mov_b32 v{vSQ+3}, v{t0}")
        a(f"s_mov_b32 s50, s{sT1}")
        a(f"s_mov_b32 s51, s{sT0}")
        if touch == 1:
            a(f"buffer_load_dword v{vSQ}, v{vSQ+2}, {sr(Wd,4)}, s50 offen")
            a(f"buffer_load_dword v{vSQ+1}, v{vSQ+3}, {sr(X,4)}, s51 offen")
            NT = 2
    srd(a, WS, 42, WS_SIZE)
    a(f"v_bfe_u32 v{t0}, v{vL}, 1, 3")
    a(f"v_xor_b32 v{t0}, v{t0}, v{vH}")
    a(f"v_lshlrev_b32 v{t1}, 7, v{vI}")
    a(f"v_add_u32 v{t1}, s{sMX}, v{t1}")
    for t in range(4):
        a(f"v_xor_b32 v{t2}, {2*t}, v{t0}")
        a(f"v_lshl_add_u32 v{vXR+t}, v{t2}, 4, v{t1}")
    a(f"v_bfe_u32 v{t0}, v{vL}, 2, 2")
    a(f"v_lshl_add_u32 v{t1}, v{vH}, 3, v{t0}")
    a(f"v_lshlrev_b32 v{t1}, 8, v{t1}")
    a(f"v_bfe_u32 v{t2}, v{vL}, 4, 1")
    a(f"v_lshl_add_u32 v{t1}, v{t2}, 5, v{t1}")
    a(f"v_and_b32 v{t2}, 3, v{vL}")
    a(f"v_lshl_add_u32 v{t1}, v{t2}, 3, v{t1}")
    for b in range(4):
        a(f"v_xor_b32 v{t2}, {b}, v{t0}")
        a(f"v_lshl_add_u32 v{vWR+b}, v{t2}, 6, v{t1}")
    a(f"v_xor_b32 v{t2}, s{sW}, v{t0}")
    a(f"v_lshl_add_u32 v{vWO}, v{t2}, 6, v{t1}")
    a(f"v_and_b32 v{t0}, 7, v{vL}")
    a(f"v_bfe_u32 v{t1}, v{vL}, 4, 1")
    a(f"v_cmp_eq_u32 vcc, v{t0}, v{t1}")
    a(f"v_mov_b32 v{t2}, 0x3f803f80")
    for i in range(4): a(f"v_mov_b32 v{vCS+i}, 0")
    a(f"v_cndmask_b32 v{vSEL}, 0, v{t2}, vcc")
    for i in range(1, 4): a(f"v_mov_b32 v{vSEL+i}, v{vSEL}")
    for b in range(4): a(f"v_mfma_f32_32x32x16_bf16 {vr(vACC+16*b,16)}, {vr(vCS,4)}, {vr(vCS,4)}, 0")
    a(f"s_mul_i32 s{sT0}, s{sW}, 2560")
    a(f"s_add_u32 s{sT0}, s{sT0}, {LDS_MISC}")
    a(f"v_add_u32 v{t0}, s{sT0}, v{vT}")
    a(f"s_lshl_b32 s{sT0}, s{sW}, 4")
    a(f"s_add_u32 s{sT0}, s{sT0}, {LDS_S8}")
    a(f"v_lshl_add_u32 v{t1}, v{vH}, 3, s{sT0}")
    a(f"s_mov_b32 s{sT3}, 0x3000")
    E = vT + 30
    a(f"s_waitcnt vmcnt({NT})")
    if touch == 2:
        a(f"buffer_load_dword v{vSQ}, v{vSQ+2}, {sr(Wd,4)}, s50 offen")
        a(f"buffer_load_dword v{vSQ+1}, v{vSQ+3}, {sr(X,4)}, s51 offen")
    a.stamp(2)
    for i in range(10):
        a(f"v_lshlrev_b32 v{E+2*i}, 16, v{vS+i}")
        a(f"v_and_b32 v{E+2*i+1}, 0xffff0000, v{vS+i}")
    a(f"v_pk_add_f32 {vr(s0,2)}, {vr(E,2)}, {vr(E+2,2)}")
    a(f"v_pk_add_f32 {vr(s1,2)}, {vr(E+4,2)}, {vr(E+6,2)}")
    for i in range(8, 20, 4):
        a(f"v_pk_add_f32 {vr(s0,2)}, {vr(s0,2)}, {vr(E+i,2)}")
        a(f"v_pk_add_f32 {vr(s1,2)}, {vr(s1,2)}, {vr(E+i+2,2)}")
    a(f"v_pk_add_f32 {vr(s0,2)}, {vr(s0,2)}, {vr(s1,2)}")
    a(f"v_add_f32 v{s0}, v{s0}, v{s0+1}")
    allreduce32(a, s0, s1)
    a(f"v_mul_f32 v{s0}, {hexf(1/640)}, v{s0}")
    a(f"v_mov_b32 v{s0+1}, v{s0}")
    for i in range(0, 20, 2):
        a(f"v_pk_add_f32 {vr(E+i,2)}, {vr(E+i,2)}, {vr(s0,2)} neg_lo:[0,1] neg_hi:[0,1]")
    a(f"v_pk_mul_f32 {vr(s1,2)}, {vr(E,2)}, {vr(E,2)}")
    a(f"v_pk_mul_f32 {vr(s2_,2)}, {vr(E+2,2)}, {vr(E+2,2)}")
    for i in range(4, 20, 4):
        a(f"v_pk_fma_f32 {vr(s1,2)}, {vr(E+i,2)}, {vr(E+i,2)}, {vr(s1,2)}")
        a(f"v_pk_fma_f32 {vr(s2_,2)}, {vr(E+i+2,2)}, {vr(E+i+2,2)}, {vr(s2_,2)}")
    a(f"v_pk_add_f32 {vr(s1,2)}, {vr(s1,2)}, {vr(s2_,2)}")
    a(f"v_add_f32 v{s1}, v{s1}, v{s1+1}")
    allreduce32(a, s1, s2_)
    mB, rB, var, dm = vT+56, vT+57, vT+58, vT+59
    a(f"v_mul_f32 v{var}, {hexf(1/640)}, v{s1}")
    a(f"v_cvt_pk_bf16_f32 v{rB}, v{s0}, v{var}")
    a(f"v_lshlrev_b32 v{mB}, 16, v{rB}")
    a(f"v_and_b32 v{rB}, 0xffff0000, v{rB}")
    a(f"v_add_f32 v{rB}, {hexf(1e-5)}, v{rB}")
    bf16r(a, rB)
    a(f"v_sqrt_f32 v{rB}, v{rB}")
    a(f"v_sub_f32 v{dm}, v{s0}, v{mB}")
    bf16r(a, rB)
    a(f"v_rcp_f32 v{rB}, v{rB}")
    a.nop(1)
    a(f"v_mul_f32 v{dm}, v{dm}, v{rB}")
    a(f"v_mul_f32 v{var}, v{var}, v{rB}")
    a(f"v_mul_f32 v{var}, v{var}, v{rB}")
    a(f"v_cvt_pk_bf16_f32 v{s1}, v{dm}, v{var}")
    a(f"v_lshlrev_b32 v{s0}, 16, v{s1}")
    a(f"v_and_b32 v{s1}, 0xffff0000, v{s1}")
    a(f"v_add_f32 v{s1}, {hexf(1e-5)}, v{s1}")
    bf16r(a, s1)
    a(f"v_sqrt_f32 v{s1}, v{s1}")
    a(f"v_sub_f32 v{dm}, v{dm}, v{s0}")
    bf16r(a, s1)
    a(f"v_rcp_f32 v{s1}, v{s1}")
    a(f"ds_write_b64 v{t1}, {vr(mB,2)}")
    a(f"v_mul_f32 v{s0}, v{dm}, v{s1}")
    a(f"v_mul_f32 v{s1}, v{s1}, v{rB}")
    a(f"v_mov_b32 v{s0+1}, v{s0}")
    a(f"v_mov_b32 v{s1+1}, v{s1}")
    for i in range(0, 20, 2):
        a(f"v_pk_fma_f32 {vr(E+i,2)}, {vr(E+i,2)}, {vr(s1,2)}, {vr(s0,2)}")
    for i in range(10):
        a(f"v_cvt_pk_bf16_f32 v{vS+i}, v{E+2*i}, v{E+2*i+1}")
    for i in range(5):
        a(f"ds_write_b64 v{t0}, {vr(vS+2*i,2)} offset:{256*i}")
    a("s_waitcnt lgkmcnt(0)")
    a(f"s_cmp_ge_u32 s{sNT}, 11")
    a(f"s_cbranch_scc1 {name}_V")

    def reads(t, fs):
        F = vF + 24*fs
        L = [f"ds_read_b128 {vr(F,4)}, v{vXR+t}"]
        for b in range(4):
            for h in range(2):
                L.append(f"ds_read_b64_tr_b16 {vr(F+4+4*b+2*h,2)}, v{vWR+b} offset:{t*4096+h*1024}")
        for h in range(2):
            L.append(f"ds_read_b64_tr_b16 {vr(F+20+2*h,2)}, v{vWO} offset:{t*4096+h*1024}")
        return L
    def advance():
        L = []
        for t in range(4):
            L.append(f"v_add_u32 v{t0}, 0x1000, v{vXR+t}\nv_bfi_b32 v{vXR+t}, s{sT3}, v{t0}, v{vXR+t}")
        for r in list(range(vWR, vWR+4)) + [vWO]:
            L.append(f"v_add_u32 v{r}, 0x4000, v{r}\nv_and_b32 v{r}, 0xffff, v{r}")
        return L
    def mfmas(fs, isV):
        F = vF + 24*fs
        L = []
        for b in range(4):
            A, B = (vr(F,4), vr(F+4+4*b,4)) if isV else (vr(F+4+4*b,4), vr(F,4))
            L.append(f"v_mfma_f32_32x32x16_bf16 {vr(vACC+16*b,16)}, {A}, {B}, {vr(vACC+16*b,16)}")
        sm = f"v_mfma_f32_16x16x32_bf16 {vr(vCS,4)}, {vr(vSEL,4)}, {vr(F+20,4)}, {vr(vCS,4)}"
        return [sm] + L if sfirst else L + [sm]
    def interleave(ms, others, per):
        idx = 0
        for i, m in enumerate(ms):
            a(m)
            for _ in range(per[i]):
                if idx < len(others): a(others[idx]); idx += 1
        assert idx == len(others)
    def mainloop(isV):
        lab = f"{name}_L{'V' if isV else 'Q'}"
        a.stamp(3)
        a("s_barrier")
        a.stamp(4)
        for x in reads(0, 0): a(x)
        a(f"s_mov_b32 s{sCnt}, 9")
        a(".p2align 3")
        a.label(lab)
        P0 = per0 or ((2, 4, 4, 1, 0) if sfirst else (4, 4, 3, 0, 0))
        P2 = per2 or ((2, 4, 4, 5, 5) if sfirst else (4, 4, 4, 4, 4))
        for t in range(4):
            fs = t % 2
            a("s_waitcnt lgkmcnt(0)")
            if t < 3:
                oth = reads(t+1, 1-fs)
                if t == 2: interleave(mfmas(fs, isV), oth + advance(), P2)
                else: interleave(mfmas(fs, isV), oth, P0)
            elif lv == 0:
                a(f"s_cmp_eq_u32 s{sCnt}, 0")
                a(f"s_cbranch_scc1 {lab}_x")
                a("s_barrier")
                a(f"s_sub_u32 s{sCnt}, s{sCnt}, 1")
                interleave(mfmas(fs, isV), reads(0, 1-fs), P0)
                a(f"s_branch {lab}")
            else:
                ms = mfmas(fs, isV)
                for m in ms[:lv]: a(m)
                a(f"s_cmp_eq_u32 s{sCnt}, 0")
                a(f"s_cbranch_scc1 {lab}_x")
                a("s_barrier")
                a(f"s_sub_u32 s{sCnt}, s{sCnt}, 1")
                rd = reads(0, 1-fs)
                for x in rd[:4]: a(x)
                interleave(ms[lv:], rd[4:], (4, 3, 0, 0, 0))
                a(f"s_branch {lab}")
        a.label(f"{lab}_x")
        for m in mfmas(1, isV)[lv:]: a(m)
        a.stamp(5)
    def cswrite():
        a(f"s_lshl_b32 s{sT0}, s{sW}, 7")
        a(f"s_add_u32 s{sT0}, s{sT0}, {LDS_CS}")
        a(f"v_lshl_add_u32 v{t0}, v{vL}, 2, s{sT0}")
    def cswrite2():
        a("s_mov_b64 exec, 0xffff")
        a(f"ds_write2_b32 v{t0}, v{vCS}, v{vCS+1} offset0:0 offset1:16")
        a("s_mov_b64 exec, -1")
        a("s_waitcnt vmcnt(0) lgkmcnt(0)")
        a("s_barrier")
    mainloop(False)
    cswrite()
    def csreg(rho): return (vF + 4*rho) if rho < 12 else (vSQ + 4*(rho-12))
    vA16, vBq, vBk, vNk = vT, vT+1, vT+2, vT+4
    a(f"v_lshlrev_b32 v{vA16}, 4, v{vL}")
    a(f"v_lshlrev_b32 v{t1}, 3, v{vI}")
    a(f"v_lshl_add_u32 v{vBq}, v{vH}, 15, v{t1}")
    a(f"v_mul_u32_u24 v{t2}, {64*KVT}, v{vH}")
    a(f"v_add_u32 v{vBk}, v{t2}, v{t1}")
    a(f"v_lshlrev_b32 v{vNk}, 8, v{vH}")
    a(f"s_lshl_b32 s{sT0}, s{sW}, 8")
    a(f"s_add_u32 s{sT0}, s{sT0}, {LDS_ST}")
    a(f"v_lshl_add_u32 v{t1}, v{vI}, 2, s{sT0}")
    a(f"v_lshlrev_b32 v{t2}, 4, v{vH}")
    a(f"v_add_u32 v{t2}, {LDS_CS}, v{t2}")
    cswrite2()
    a.stamp(6)
    m, r = vT+50, vT+51
    a(f"ds_read2_b32 {vr(m,2)}, v{t1} offset0:0 offset1:32")
    for rho in range(15):
        a(f"ds_read_b128 {vr(csreg(rho),4)}, v{t2} offset:{rho*32}")
    sG, sQT = 33, 34
    a(f"s_mul_i32 s{sG}, s{sNT}, 6")
    a(f"s_lshl_b32 s{sQT}, s{sMT}, 2")
    a(f"s_add_u32 s{sQT}, s{sQT}, s{sW}")
    rq = vT + 5
    mm = vT + 6
    a("s_waitcnt lgkmcnt(15)")
    a(f"v_mul_f32 v{rq}, {hexf(QSCALE)}, v{r}")
    a(f"v_mov_b32 v{mm}, v{m}")
    a(f"v_mov_b32 v{mm+1}, v{m}")
    rr = vT + 8
    P = vT + 12
    n0, n1, n2 = vT+24+2, vT+24+4, vT+24+6
    for p in range(3):
        r0 = 5*p
        end = f"{name}_p{p}e"
        a(f"s_add_u32 s{sT0}, s{sG}, {2*p}")
        if p == 2:
            a(f"s_cmp_ge_u32 s{sT0}, 64")
            a(f"s_cbranch_scc1 {end}")
        a(f"s_waitcnt lgkmcnt({10-5*p})")
        for rho in range(r0, r0+5):
            for hh in range(2):
                A = vACC + 4*rho + 2*hh
                a(f"v_pk_fma_f32 {vr(A,2)}, {vr(mm,2)}, {vr(csreg(rho)+2*hh,2)}, {vr(A,2)} neg_lo:[1,0,0] neg_hi:[1,0,0]")
        def ss(dst, rhos):
            first = True
            for rho in rhos:
                for hh in range(2):
                    A = vACC + 4*rho + 2*hh
                    if first: a(f"v_pk_mul_f32 {vr(dst,2)}, {vr(A,2)}, {vr(A,2)}"); first = False
                    else: a(f"v_pk_fma_f32 {vr(dst,2)}, {vr(A,2)}, {vr(A,2)}, {vr(dst,2)}")
        ss(n0, (r0, r0+1)); ss(n1, (r0+3, r0+4)); ss(n2, (r0+2,))
        a(f"v_add_f32 v{n0}, v{n0}, v{n0+1}")
        a(f"v_add_f32 v{n1}, v{n1}, v{n1+1}")
        a(f"v_add_f32 v{n2}, v{n2}, v{n2+1}")
        a(f"s_cmp_lt_u32 s{sT0}, 32")
        a(f"s_cselect_b64 vcc, -1, 0")
        a(f"v_permlane32_swap_b32 v{n0}, v{n1}")
        a(f"v_cndmask_b32 v{rr}, v{r}, v{rq}, vcc")
        a(f"v_cndmask_b32 v{rr+1}, v{r}, v{rq}, vcc")
        a(f"v_add_f32 v{n0}, v{n0}, v{n1}")
        a(f"v_add_f32 v{n0}, v{n0}, v{n2}")
        a(f"v_sqrt_f32 v{n0}, v{n0}")
        for k in range(10):
            A = vACC + 4*r0 + 2*k
            a(f"v_pk_mul_f32 {vr(A,2)}, {vr(A,2)}, {vr(rr,2)}")
        a(f"v_mul_f32 v{n0}, v{n0}, v{rr}")
        for k in range(4): a(f"v_cvt_pk_bf16_f32 v{P+k}, v{vACC+4*r0+2*k}, v{vACC+4*r0+2*k+1}")
        for k in range(4): a(f"v_cvt_pk_bf16_f32 v{P+4+k}, v{vACC+4*(r0+3)+2*k}, v{vACC+4*(r0+3)+2*k+1}")
        for k in range(2): a(f"v_cvt_pk_bf16_f32 v{P+8+k}, v{vACC+4*(r0+2)+2*k}, v{vACC+4*(r0+2)+2*k+1}")
        a(f"s_cbranch_scc0 {name}_p{p}k")
        a(f"s_lshl_b32 s{sT1}, s{sT0}, 6")
        a(f"s_add_u32 s{sT1}, s{sT1}, s{sQT}")
        a(f"s_lshl_b32 s{sT2}, s{sT1}, 10")
        a(f"s_add_u32 s{sT2}, s{sT2}, {WS_QA}")
        a(f"s_add_u32 s{sT3}, s{sT2}, 65536")
        a(f"v_mul_f32 v{n1}, {hexf(-(1+2**-7))}, v{n0}")
        a(f"v_mov_b32 v{n1+1}, 0")
        a(f"buffer_store_dwordx4 {vr(P,4)}, v{vA16}, {sr(WS,4)}, s{sT2} offen {stf}")
        a(f"buffer_store_dwordx4 {vr(P+4,4)}, v{vA16}, {sr(WS,4)}, s{sT3} offen {stf}")
        a(f"v_cvt_pk_bf16_f32 v{n1}, v{n1}, v{n1+1}")
        a(f"s_lshl_b32 s{sT2}, s{sT1}, 9")
        a(f"s_add_u32 s{sT2}, s{sT2}, {WS_QB}")
        a(f"buffer_store_dwordx2 {vr(P+8,2)}, v{vBq}, {sr(WS,4)}, s{sT2} offen {stf}")
        a(f"buffer_store_dwordx2 {vr(n1,2)}, v{vBq}, {sr(WS,4)}, s{sT2} offen offset:256 {stf}")
        a(f"s_branch {name}_p{p}m")
        a.label(f"{name}_p{p}k")
        a(f"s_lshl_b32 s{sT1}, s{sT0}, 6")
        a(f"s_add_u32 s{sT1}, s{sT1}, s{sQT}")
        a(f"s_mul_i32 s{sT2}, s{sT1}, {KVT}")
        a(f"s_add_u32 s{sT2}, s{sT2}, {(WS_KV - 32*64*KVT) & 0xffffffff}")
        a(f"s_add_u32 s{sT3}, s{sT2}, {64*KVT}")
        a(f"buffer_store_dwordx4 {vr(P,4)}, v{vA16}, {sr(WS,4)}, s{sT2} offen {stf}")
        a(f"buffer_store_dwordx4 {vr(P+4,4)}, v{vA16}, {sr(WS,4)}, s{sT3} offen {stf}")
        a(f"buffer_store_dwordx2 {vr(P+8,2)}, v{vBk}, {sr(WS,4)}, s{sT2} offen offset:1024 {stf}")
        a.label(f"{name}_p{p}m")
        for ror in (8, 4, 2, 1):
            a.nop(2)
            a(f"v_max_f32_dpp v{n0}, v{n0}, v{n0} row_ror:{ror} row_mask:0xf bank_mask:0xf")
        a(f"v_mov_b32 v{n2}, v{n0}")
        a(f"s_lshl_b32 s{sT3}, s{sT1}, 2")
        a(f"s_add_u32 s{sT3}, s{sT3}, {WS_QMAX}")
        a(f"v_permlane16_swap_b32 v{n0}, v{n2}")
        a(f"v_max_f32 v{n0}, v{n0}, v{n2}")
        a("s_mov_b32 exec_lo, 1")
        a("s_mov_b32 exec_hi, 1")
        a(f"buffer_store_dword v{n0}, v{vNk}, {sr(WS,4)}, s{sT3} offen {stf}")
        a("s_mov_b64 exec, -1")
        a.label(end)
    if diag: a("s_waitcnt vmcnt(0)")
    a.stamp(7); a.stamp(9, True)
    a.dump_stamps(10, WS, sWV, WS_DIAG)
    a("s_endpgm")
    a.label(f"{name}_V")
    mainloop(True)
    cswrite()
    vV = vT
    a(f"s_sub_u32 s{sT0}, s{sNT}, 11")
    a(f"s_lshl_b32 s{sT0}, s{sT0}, 7")
    a(f"s_mov_b32 s{sT1}, {64*KVT}")
    a(f"v_mul_u32_u24 v{t3}, 320, v{vH}")
    for b in range(4):
        a(f"v_add_u32 v{vV+b}, s{sT0}, v{vI}")
        if b: a(f"v_add_u32 v{vV+b}, {32*b}, v{vV+b}")
        a(f"v_mul_u32_u24 v{t1}, 3277, v{vV+b}")
        a(f"v_lshrrev_b32 v{t1}, 16, v{t1}")
        a(f"v_mul_u32_u24 v{t2}, 20, v{t1}")
        a(f"v_sub_u32 v{vV+b}, v{vV+b}, v{t2}")
        a(f"v_mul_lo_u32 v{t1}, v{t1}, s{sT1}")
        a(f"v_lshl_add_u32 v{vV+b}, v{vV+b}, 4, v{t3}")
        a(f"v_add_u32 v{vV+b}, v{vV+b}, v{t1}")
    a(f"s_lshl_b32 s{sT0}, s{sW}, 8")
    a(f"s_add_u32 s{sT0}, s{sT0}, {LDS_ST}")
    a(f"v_lshl_add_u32 v{t1}, v{vH}, 4, s{sT0}")
    a(f"v_lshlrev_b32 v{t2}, 2, v{vI}")
    a(f"v_add_u32 v{t2}, {LDS_CS}, v{t2}")
    cswrite2()
    a.stamp(6)
    M, R, CSv = vF, vF+16, vF+32
    for b in range(4):
        a(f"ds_read_b32 v{CSv+2*b}, v{t2} offset:{128*b}")
    for i in range(4):
        a(f"ds_read_b128 {vr(M+4*i,4)}, v{t1} offset:{32*i}")
        a(f"ds_read_b128 {vr(R+4*i,4)}, v{t1} offset:{128+32*i}")
    a(f"s_lshl_b32 s{sT0}, s{sMT}, 2")
    a(f"s_add_u32 s{sT0}, s{sT0}, s{sW}")
    a(f"s_mul_i32 s{sT0}, s{sT0}, {KVT}")
    a(f"s_add_u32 s{sT0}, s{sT0}, {WS_KV+1280}")
    a("s_waitcnt lgkmcnt(8)")
    P = vT + 8
    for b in range(4):
        a(f"v_mov_b32 v{CSv+2*b+1}, v{CSv+2*b}")
    a("s_waitcnt lgkmcnt(0)")
    for b in range(4):
        for k in range(8):
            A = vACC + 16*b + 2*k
            a(f"v_pk_fma_f32 {vr(A,2)}, {vr(M+2*k,2)}, {vr(CSv+2*b,2)}, {vr(A,2)} neg_lo:[1,0,0] neg_hi:[1,0,0]")
        for k in range(8):
            A = vACC + 16*b + 2*k
            a(f"v_pk_mul_f32 {vr(A,2)}, {vr(A,2)}, {vr(R+2*k,2)}")
        PP = P + 8*(b % 2)
        for k in range(8):
            a(f"v_cvt_pk_bf16_f32 v{PP+k}, v{vACC+16*b+2*k}, v{vACC+16*b+2*k+1}")
        a(f"buffer_store_dwordx4 {vr(PP,4)}, v{vV+b}, {sr(WS,4)}, s{sT0} offen {stf}")
        a(f"buffer_store_dwordx4 {vr(PP+4,4)}, v{vV+b}, {sr(WS,4)}, s{sT0} offen offset:640 {stf}")
    if diag: a("s_waitcnt vmcnt(0)")
    a.stamp(7); a.stamp(9, True)
    a.dump_stamps(10, WS, sWV, WS_DIAG)
    a.label(f"{name}_end")
    a("s_endpgm")
    return a, dict(vgpr=232, sgpr=102, lds=K1_LDS+64, grid=256, block=512)
```

```python
from asmlib import *
from layout import *
from k1 import srd
import math

LDS_AX = 0
LDS_G = 73728
GREG = 21504
LDS_CNT = LDS_G + 4*GREG
LDS_TOT = LDS_CNT + 64
THRESH = 60.0

def lds_arrive(a, vA, vT, off):
    a("s_waitcnt lgkmcnt(0)")
    a("s_mov_b64 exec, 1")
    a(f"v_mov_b32 v{vT}, 1")
    a(f"ds_add_u32 v{vA}, v{vT} offset:{off}")
    a("s_mov_b64 exec, -1")
def lds_wait(a, vA, vT, sT, off, target, lab):
    a.label(lab)
    a(f"ds_read_b32 v{vT}, v{vA} offset:{off}")
    a("s_waitcnt lgkmcnt(0)")
    a(f"v_readfirstlane_b32 s{sT}, v{vT}")
    a.nop(1)
    a(f"s_cmp_ge_u32 s{sT}, {target}")
    a(f"s_cbranch_scc1 {lab}x")
    a("s_sleep 1")
    a(f"s_branch {lab}")
    a.label(f"{lab}x")
def lds_sync(a, vA, vT, sT, off, target, lab):
    lds_arrive(a, vA, vT, off); lds_wait(a, vA, vT, sT, off, target, lab)

def gen_k2(name, diag=False, R=4, R2=4, do_attn=True, do_gemm=True, prio_attn=0, prio_mm=0, prio_va=3, rot=False, xp='', kv='ring', slp=4, slpo=1, p1=1, otf='', eprio=True, split=True, rt=False, pat='1aeeee2eeeecc3bcceeee4deeeecccc'):
    a = Asm(); a.diag = diag; a.rt = rt
    LDS_MX = LDS_AX + 15360
    sW, sWV = 3, 37
    WS, W1, B1, W2, B2, X = 20, 12, 16, 60, 64, 68
    sT0, sT1, sT2, sT3 = 28, 29, 30, 31
    sXC, sJ = 10, 11
    vL, vI, vH, vCNT = 1, 2, 3, 4
    a.label(name)
    a(f"s_cmp_ge_u32 s2, 256")
    a(f"s_cbranch_scc1 {name}_end")
    a.stamp(0); a.stamp(8, True)
    a("s_load_dwordx2 s[8:9], s[0:1], 80")
    a("s_load_dwordx8 s[72:79], s[0:1], 32")
    a("s_load_dwordx2 s[4:5], s[0:1], 0")
    a("s_load_dwordx2 s[6:7], s[0:1], 16")
    a("s_load_dwordx2 s[26:27], s[0:1], 64")
    a("v_lshrrev_b32 v2, 6, v0")
    a(f"v_and_b32 v{vL}, 63, v0")
    a(f"v_readfirstlane_b32 s{sWV}, v2")
    a(f"s_and_b32 s{sXC}, s2, 7")
    a(f"s_lshr_b32 s{sJ}, s2, 3")
    a(f"s_and_b32 s{sW}, s{sWV}, 3")
    a(f"v_and_b32 v{vI}, 31, v{vL}")
    a(f"v_lshrrev_b32 v{vH}, 5, v{vL}")
    a(f"v_mov_b32 v{vCNT}, {LDS_CNT}")
    a(f"s_cmp_ge_u32 s{sWV}, 4")
    a(f"s_cbranch_scc1 {name}_G")
    if prio_attn: a(f"s_setprio {prio_attn}")
    sHD, sQB, sKV, sKV0, sCnt, sQ = 32, 33, 34, 35, 36, 38
    sE_V, sE_LO, sE_HI = 40, 42, 44
    vKA, vKB, vV, t0, t1, t2, t3 = 5, 6, 7, 8, 9, 10, 11
    KVS = lambda s: 12 + 14*s
    P = 40; S = lambda i: 48 + 16*(i % 2); Q = lambda j: 80 + 6*j; O = lambda j: 128 + 16*j
    a(f"s_and_b32 s{sHD}, s{sJ}, 3")
    a(f"s_lshl_b32 s{sT0}, s{sXC}, 2")
    a(f"s_add_u32 s{sHD}, s{sHD}, s{sT0}")
    a(f"s_lshr_b32 s{sQB}, s{sJ}, 2")
    a(f"s_mov_b32 s{sE_V}, 0xfffff")
    a(f"s_mov_b32 s{sE_V+1}, 0xfffff")
    a(f"s_mov_b32 s{sE_LO}, -1")
    a(f"s_mov_b32 s{sE_LO+1}, 0")
    a(f"s_mov_b32 s{sE_HI}, 0")
    a(f"s_mov_b32 s{sE_HI+1}, -1")
    a(f"v_lshlrev_b32 v{vKA}, 4, v{vL}")
    a(f"v_lshlrev_b32 v{vKB}, 3, v{vL}")
    a(f"v_mul_u32_u24 v{t0}, 20, v{vH}")
    a(f"v_add_u32 v{t0}, v{t0}, v{vI}")
    a(f"v_lshlrev_b32 v{vV}, 4, v{t0}")
    a(f"v_lshlrev_b32 v{t2}, 2, v{vL}")
    a(f"s_lshl_b32 s{sT0}, s{sHD}, 6")
    a(f"s_lshl_b32 s{sT1}, s{sW}, 4")
    a(f"s_add_u32 s{sT1}, s{sT1}, s{sT0}")
    a(f"s_mul_i32 s{sKV0}, s{sT1}, {KVT}")
    a(f"s_add_u32 s{sKV0}, s{sKV0}, {WS_KV}")
    a(f"s_lshl_b32 s{sT1}, s{sQB}, 3")
    a(f"s_add_u32 s{sQ}, s{sT0}, s{sT1}")
    a(f"s_lshl_b32 s{sT3}, s{sW}, 1")
    a(f"v_cmp_eq_u32 vcc, 20, v{vI}")
    a(f"v_mov_b32 v{t0}, 0x3f803f80")
    a(f"s_lshl_b32 s{sT2}, s{sHD}, 8")
    a(f"s_add_u32 s{sT2}, s{sT2}, {WS_KMAX}")
    a(f"v_cndmask_b32 v{t1}, 0, v{t0}, vcc")
    for s in range(2):
        for k in range(4, 12): a(f"v_mov_b32 v{KVS(s)+k}, v{t1}")
        a(f"v_mov_b32 v{KVS(s)+13}, 0")
    for k in range(8): a(f"v_mov_b32 v{P+k}, 0")
    a(f"v_and_b32 v{t1}, 28, v{t2}")
    sRB, sSL, sSD = 39, 46, 47
    a(f"s_mov_b32 s{sKV}, s{sKV0}")
    a(f"s_mul_i32 s{sRB}, s{sW}, 18432")
    a(f"s_mov_b32 s{sSL}, s{sRB}")
    a(f"s_mov_b32 s{sSD}, s{sRB}")
    sRE = 64
    a(f"s_add_u32 s{sRE}, s{sRB}, 15360")
    a(f"s_lshl_b32 s{sT1}, s{sQ}, 2")
    a(f"s_add_u32 s{sT1}, s{sT1}, {WS_QMAX}")
    a("s_waitcnt lgkmcnt(0)")
    srd(a, WS, 8, WS_SIZE)
    if not do_attn:
        a("s_barrier"); a("s_endpgm")
    assert kv == "ring"
    def kvdma():
        L = []
        for k in range(5):
            L.append(f"s_add_u32 m0, s{sSD}, {(k//4)*4096}" if k % 4 == 0 else None)
            if k == 4: L.append(f"s_add_u32 s{sKV}, s{sKV}, 4096")
            elif k == 0: L.append("s_nop 0")
            L.append(f"buffer_load_dwordx4 v{vKA}, {sr(WS,4)}, s{sKV} offen offset:{(k%4)*1024} lds")
        L += [f"s_add_u32 s{sKV}, s{sKV}, 1024",
              f"s_add_u32 s{sSD}, s{sSD}, 5120"]
        return [x for x in L if x]
    a(f"buffer_load_dword v{t3}, v{t2}, {sr(WS,4)}, s{sT2} offen")
    a(f"buffer_load_dword v{S(1)}, v{t1}, {sr(WS,4)}, s{sT1} offen")
    a(f"s_add_u32 s{sT0}, s{sQ}, s{sT3}")
    a(f"s_lshl_b32 s{sT1}, s{sT0}, 10")
    a(f"s_add_u32 s{sT1}, s{sT1}, {WS_QA}")
    a(f"s_mov_b32 m0, s{sRE}")
    a(f"s_lshl_b32 s{sT0}, s{sT0}, 9")
    a(f"buffer_load_dwordx4 v{vKA}, {sr(WS,4)}, s{sT1} offen lds")
    a(f"buffer_load_dwordx4 v{vKA}, {sr(WS,4)}, s{sT1} offen offset:1024 lds")
    a(f"s_add_u32 s{sT0}, s{sT0}, {WS_QB - 2048}")
    a(f"buffer_load_dwordx4 v{vKA}, {sr(WS,4)}, s{sT0} offen offset:2048 lds")
    for x in kvdma(): a(x)
    if p1 == 0:
        for x in kvdma(): a(x)
    def kvaddr():
        return [f"v_add_u32 v{t0}, s{sSL}, v{vKA}", f"v_add_u32 v{t1}, s{sSL}, v{vKB}", f"v_add_u32 v{t2}, s{sSL}, v{vV}"]
    def kvread(s, o):
        K = KVS(s)
        return [f"ds_read_b128 {vr(K,4)}, v{t0} offset:{o}",
                f"s_mov_b64 exec, {sr(sE_LO,2)}",
                f"ds_read_b64 {vr(K+12,2)}, v{t1} offset:{o+1024}",
                f"s_mov_b64 exec, {sr(sE_V,2)}",
                f"ds_read_b128 {vr(K+4,4)}, v{t2} offset:{o+1280}",
                f"ds_read_b128 {vr(K+8,4)}, v{t2} offset:{o+1920}",
                f"s_mov_b64 exec, -1"]
    def zeroO():
        for j in range(8): a(f"v_mfma_f32_32x32x16_bf16 {vr(O(j),16)}, {vr(P,4)}, {vr(P,4)}, 0")
    zeroO()
    for x in kvaddr(): a(x)
    QAd = S(0)
    for p in range(4):
        a(f"s_xor_b32 s{sT0}, s{sW}, {p}")
        a(f"s_mul_i32 s{sT0}, s{sT0}, 18432")
        a(f"s_add_u32 s{sT0}, s{sT0}, 15360")
        a(f"v_add_u32 v{QAd+2*p}, s{sT0}, v{vKA}")
        a(f"v_add_u32 v{QAd+2*p+1}, s{sT0}, v{vKB}")
    qm = S(1)
    a(f"s_waitcnt vmcnt({13 if p1 == 0 else 8})")
    for ror in (8, 4, 2, 1):
        a(f"v_max_f32_dpp v{t3}, v{t3}, v{t3} row_ror:{ror} row_mask:0xf bank_mask:0xf")
        if ror < 8: a(f"v_max_f32_dpp v{qm}, v{qm}, v{qm} row_ror:{ror} row_mask:0xf bank_mask:0xf")
        else: a("s_nop 0")
        a("s_nop 0")
    a(f"v_mov_b32 v{qm+1}, v{t3}")
    a.nop(2)
    a(f"v_permlane16_swap_b32 v{t3}, v{qm+1}")
    a(f"v_max_f32 v{t3}, v{t3}, v{qm+1}")
    a(f"v_mov_b32 v{qm+1}, v{t3}")
    a.nop(2)
    a(f"v_permlane32_swap_b32 v{t3}, v{qm+1}")
    a(f"v_max_f32 v{t3}, v{t3}, v{qm+1}")
    a(f"v_mul_f32 v{t3}, {hexf(1+2**-7)}, v{t3}")
    a(f"v_mov_b32 v{qm+2}, {hexf(THRESH/(1+2**-6))}")
    a(f"v_mul_f32 v{qm}, v{qm}, v{t3}")
    a(f"v_cvt_pk_bf16_f32 v{t3}, v{t3}, v{KVS(0)+13}")
    a(f"v_cmp_nle_f32 vcc, v{qm}, v{qm+2}")
    a(f"v_mov_b32 v{KVS(0)+12}, v{t3}")
    a(f"v_mov_b32 v{KVS(1)+12}, v{t3}")
    a.stamp(1)
    a(f"s_waitcnt vmcnt({10 if p1 == 0 else 5})")
    if p1 == 1:
        for x in kvdma(): a(x)
    a("s_barrier")
    a.stamp(2)
    for j in range(8):
        a(f"ds_read_b128 {vr(Q(j),4)}, v{QAd+2*(3^(j>>1))} offset:{(j&1)*1024}")
        a(f"ds_read_b64 {vr(Q(j)+4,2)}, v{QAd+2*(3^(j>>1))+1} offset:{2048+(j&1)*512}")
    a("s_waitcnt vmcnt(5)")
    a(f"s_cbranch_vccnz {name}_FB")
    a.label(f"{name}_M")
    def QK(n, s):
        j = n % 8; K = KVS(s)
        return (f"v_mfma_f32_32x32x16_bf16 {vr(S(n),16)}, {vr(K,4)}, {vr(Q(j),4)}, 0",
                f"v_mfma_f32_32x32x8_bf16 {vr(S(n),16)}, {vr(K+12,2)}, {vr(Q(j)+4,2)}, {vr(S(n),16)}")
    def PV(j, s, m):
        return f"v_mfma_f32_32x32x16_bf16 {vr(O(j),16)}, {vr(KVS(s)+4+4*m,4)}, {vr(P+4*m,4)}, {vr(O(j),16)}"
    for x in kvread(0, 0): a(x)
    a("s_waitcnt lgkmcnt(0)")
    for x in QK(0, 0): a(x)
    a(f"s_mov_b32 s{sCnt}, 8")
    a.nop(10)
    a.stamp(3); a.rstamp(0)
    def dload(s):
        K = KVS(s)
        return [[f"buffer_load_dwordx4 {vr(K,4)}, v{vKA}, {sr(WS,4)}, s{sKV} offen"],
                [f"s_mov_b64 exec, {sr(sE_LO,2)}", f"buffer_load_dwordx2 {vr(K+12,2)}, v{vKB}, {sr(WS,4)}, s{sKV} offen offset:1024", "s_mov_b64 exec, -1"],
                [f"s_mov_b64 exec, {sr(sE_V,2)}", f"buffer_load_dwordx4 {vr(K+4,4)}, v{vV}, {sr(WS,4)}, s{sKV} offen offset:1280", "s_mov_b64 exec, -1"],
                [f"s_mov_b64 exec, {sr(sE_V,2)}", f"buffer_load_dwordx4 {vr(K+8,4)}, v{vV}, {sr(WS,4)}, s{sKV} offen offset:1920", "s_mov_b64 exec, -1", f"s_add_u32 s{sKV}, s{sKV}, {KVT}"]]
    def rd(s, o):
        K = KVS(s)
        return [[f"ds_read_b128 {vr(K,4)}, v{t0} offset:{o}"],
                [f"s_mov_b64 exec, {sr(sE_LO,2)}", f"ds_read_b64 {vr(K+12,2)}, v{t1} offset:{o+1024}", "s_mov_b64 exec, -1"],
                [f"s_mov_b64 exec, {sr(sE_V,2)}", f"ds_read_b128 {vr(K+4,4)}, v{t2} offset:{o+1280}", f"ds_read_b128 {vr(K+8,4)}, v{t2} offset:{o+1920}", "s_mov_b64 exec, -1"]]
    def dm(k):
        L = [f"buffer_load_dwordx4 v{vKA}, {sr(WS,4)}, s{sKV} offen offset:{(k%4)*1024} lds"]
        if k == 3: L += [f"s_add_u32 m0, s{sSD}, 4096", f"s_add_u32 s{sKV}, s{sKV}, 4096"]
        if k == 4: L += [f"s_add_u32 s{sKV}, s{sKV}, 1024"]
        return L
    def abody(lab, dma, last=False):
      if lab:
          a(".p2align 3")
          a.label(lab)
      for s in range(2):
        for j in range(8):
            sa = S(j)
            M1, M2 = QK(j+1, s if j < 7 else 1-s)
            M3 = PV((j-1) % 8, s if j > 0 else 1-s, 1)
            M4 = PV(j, s, 0)
            e = [f"v_exp_f32 v{sa+i}, v{sa+i}" for i in range(16)]
            c = [f"v_cvt_pk_bf16_f32 v{P+i}, v{sa+2*i}, v{sa+2*i+1}" for i in range(8)]
            pre = []; x1 = []; x3 = []; x4 = []
            if kv == "ring":
                if j == 7: pre = ["s_waitcnt lgkmcnt(0)"]
                r = rd(1-s, KVT if s == 0 else 0)
                if j < 3: x3 = r[j]
                if s == 0 and dma:
                    if j == 0: x4 = [f"s_mov_b32 m0, s{sSD}"]
                    if 1 <= j <= 5 and 'N' not in xp: x1 = dm(j-1)
                    if j == 6: x1 = [f"s_add_u32 s{sSD}, s{sSD}, 5120", f"s_cmp_eq_u32 s{sSD}, s{sRE}", f"s_cselect_b32 s{sSD}, s{sRB}, s{sSD}"]
                if s == 0 and j == 3: x3 = [f"s_add_u32 s{sSL}, s{sSL}, 5120", f"s_cmp_eq_u32 s{sSL}, s{sRE}", f"s_cselect_b32 s{sSL}, s{sRB}, s{sSL}"]
                if s == 0 and j == 7: x3 = kvaddr() + [f"s_waitcnt vmcnt({5 if dma else 0})"]
                if last and s == 0 and j >= 3: x3 = [f"v_add_u32 v{t3}, s{sRB}, v{vKA}"] if j == 7 else []
                if last and s == 1:
                    pre = []; x3 = []
                    if j >= 2: x1 = [f"ds_write_b128 v{t3}, {vr(O(j-2)+4*k,4)} offset:{LDS_AX + (j-2)*3072 + k*1024}" for k in range(3)]
            elif kv == "direct":
                if j == 7: pre = ["s_waitcnt vmcnt(2)"]
                if j == 0: x3 = ["s_waitcnt vmcnt(0)"] + sum(dload(1-s), [])
            elif kv == "spread":
                d = dload(1-s)
                if j == 7: pre = ["s_waitcnt vmcnt(2)"]
                if j == 0: x3 = ["s_waitcnt vmcnt(0)"] + d[0]
                if 1 <= j <= 3: x3 = d[j]
            M5 = PV((j-1) % 8, s if j > 0 else 1-s, 0)
            Ms = {"1": M1, "2": M2, "3": M3, "4": M4, "5": M5}
            ie = ic = 0
            for ch in pat:
                if ch == "e": a(e[ie]); ie += 1
                elif ch == "c": a(c[ic]); ic += 1
                elif ch == "a":
                    for x in x1: a(x)
                elif ch == "b":
                    for x in x3: a(x)
                elif ch == "d":
                    for x in x4: a(x)
                    if j == 7 and s == 1 and lab:
                        a(f"s_sub_u32 s{sCnt}, s{sCnt}, 1")
                        a(f"s_cmp_lg_u32 s{sCnt}, {2 if (kv == 'ring' and dma) else 0}")
                else:
                    if ch == "1":
                        for x in pre: a(x)
                    a(Ms[ch])
            assert ie == 16 and ic == 8
      if lab: a(f"s_cbranch_scc1 {lab}")
    abody(f"{name}_AL", True)
    abody(None, False)
    abody(None, False, True)
    if eprio: a("s_setprio 3")
    lds_arrive(a, vCNT, t0, 0)
    a.nop(1)
    if "5" in pat: a(PV(7, 1, 0))
    a(PV(7, 1, 1))
    a.stamp(4); a.rstamp(1)
    for p in range(1, 4):
        a(f"s_xor_b32 s{sT1}, s{sW}, {p}")
        a(f"s_mul_i32 s{sT1}, s{sT1}, 18432")
        a(f"s_add_u32 s{sT1}, s{sT1}, {LDS_AX + (3^p)*6144}")
        a(f"v_add_u32 v{t0+p}, s{sT1}, v{vKA}")
    a(f"s_lshl_b32 s{sT0}, s{sQB}, 2")
    a(f"s_add_u32 s{sT3}, s{sT0}, s{sW}")
    a(f"s_lshl_b32 s{sT0}, s{sT3}, 6")
    a(f"s_add_u32 s{sT0}, s{sT0}, s{sHD}")
    a(f"s_lshl_b32 s{sT1}, s{sT0}, 8")
    a(f"s_add_u32 s{sT1}, s{sT1}, {WS_OL}")
    a(f"s_lshl_b32 s{sT0}, s{sT0}, 10")
    a(f"s_add_u32 s{sT0}, s{sT0}, {WS_O}")
    a(f"s_lshl_b32 s{sKV}, s{sHD}, 5")
    a(f"s_add_u32 s{sKV}, s{sKV}, s{sT3}")
    a(f"s_lshl_b32 s{sKV}, s{sKV}, 6")
    a(f"s_add_u32 s{sKV}, s{sKV}, {WS_OFL}")
    lds_wait(a, vCNT, t0, sT2, 0, 4, f"{name}_s0")
    a.stamp(5); a.rstamp(2)
    Rb = 12
    for p in range(1, 4):
        for jj in range(2):
            for k in range(3):
                a(f"ds_read_b128 {vr(Rb + ((p-1)*6 + jj*3 + k)*4, 4)}, v{t0+p} offset:{jj*3072 + k*1024}")
    for p in range(1, 4):
        a(f"s_waitcnt lgkmcnt({(3-p)*6})")
        for jj in range(2):
            for k in range(0, 12, 2):
                A = O(6+jj) + k; B = Rb + ((p-1)*6 + jj*3)*4 + k
                a(f"v_pk_add_f32 {vr(A,2)}, {vr(A,2)}, {vr(B,2)}")
    u = 88
    for jj in range(2):
        a(f"v_mov_b32 v{u+2*jj}, v{O(6+jj)+8}")
        a(f"v_mov_b32 v{u+2*jj+1}, v{O(6+jj)+8}")
    a.nop(1)
    for jj in range(2):
        a(f"v_permlane32_swap_b32 v{u+2*jj}, v{u+2*jj+1}")
    for jj in range(2):
        a(f"v_rcp_f32 v{u+2*jj}, v{u+2*jj+1}")
    a.nop(1)
    for jj in range(2):
        a(f"v_mov_b32 v{u+2*jj+1}, v{u+2*jj}")
    for jj in range(2):
        for k in range(0, 12, 2):
            A = O(6+jj) + k
            a(f"v_pk_mul_f32 {vr(A,2)}, {vr(A,2)}, {vr(u+2*jj,2)}")
        PP = 96 + 8*jj
        for k in range(6):
            a(f"v_cvt_pk_bf16_f32 v{PP+k}, v{O(6+jj)+2*k}, v{O(6+jj)+2*k+1}")
        a(f"buffer_store_dwordx4 {vr(PP,4)}, v{vKA}, {sr(WS,4)}, s{sT0} offen sc1")
        a(f"s_mov_b64 exec, {sr(sE_LO,2)}")
        a(f"buffer_store_dwordx2 {vr(PP+4,2)}, v{vKB}, {sr(WS,4)}, s{sT1} offen sc1")
        a(f"s_mov_b64 exec, -1")
        if jj == 0:
            a(f"s_add_u32 s{sT0}, s{sT0}, 32768")
            a(f"s_add_u32 s{sT1}, s{sT1}, 8192")
    a.stamp(6); a.rstamp(3)
    a(f"v_mov_b32 v{t0}, 1")
    a(f"v_mov_b32 v{t1}, 0")
    a("s_mov_b64 exec, 1")
    a("s_waitcnt vmcnt(0)")
    a.rstamp(4)
    a(f"buffer_store_dword v{t0}, v{t1}, {sr(WS,4)}, s{sKV} offen sc1")
    if diag: a("s_waitcnt vmcnt(0)")
    a.stamp(7); a.stamp(9, True)
    a.dump_stamps(10, WS, sWV, WS_DIAG)
    a("s_endpgm")

    a.label(f"{name}_FB")
    def kload():
        K = KVS(1)
        return [f"buffer_load_dwordx4 {vr(K,4)}, v{vKA}, {sr(WS,4)}, s{sKV0} offen",
                f"s_mov_b64 exec, {sr(sE_LO,2)}",
                f"buffer_load_dwordx2 {vr(K+12,2)}, v{vKB}, {sr(WS,4)}, s{sKV0} offen offset:1024",
                f"s_mov_b64 exec, -1",
                f"s_add_u32 s{sKV0}, s{sKV0}, {KVT}"]
    MX = 128
    lds_sync(a, vCNT, t0, sT0, 20, 4, f"{name}_s5")
    a(f"s_mov_b64 exec, {sr(sE_HI,2)}")
    for j in range(8): a(f"v_mov_b32 v{Q(j)+4}, 0")
    for s in range(2):
        a(f"v_mov_b32 v{KVS(s)+12}, 0x3f803f80")
        a(f"v_mov_b32 v{KVS(s)+13}, 0x3f80")
    a("s_mov_b64 exec, -1")
    for j in range(8): a(f"v_mov_b32 v{MX+j}, 0xff800000")
    a(f"s_mov_b32 s{sCnt}, 16")
    a.label(f"{name}_FL")
    for x in kload(): a(x)
    a("s_waitcnt vmcnt(0)")
    for j in range(8):
        for x in QK(j, 1): a(x)
        a.nop(12)
        for k in range(0, 16, 2):
            a(f"v_max3_f32 v{MX+j}, v{MX+j}, v{S(j)+k}, v{S(j)+k+1}")
    a(f"s_sub_u32 s{sCnt}, s{sCnt}, 1")
    a(f"s_cmp_lg_u32 s{sCnt}, 0")
    a(f"s_cbranch_scc1 {name}_FL")
    for j in range(8):
        a(f"v_mov_b32 v{MX+8+j}, v{MX+j}")
    a.nop(1)
    for j in range(8):
        a(f"v_permlane32_swap_b32 v{MX+j}, v{MX+8+j}")
    for j in range(8):
        a(f"v_max_f32 v{MX+j}, v{MX+j}, v{MX+8+j}")
    a(f"s_lshl_b32 s{sT3}, s{sW}, 1")
    a(f"v_lshlrev_b32 v{t2}, 2, v{vI}")
    for j in range(8):
        a(f"s_xor_b32 s{sT0}, s{sT3}, {j ^ 6}")
        a(f"s_lshl_b32 s{sT0}, s{sT0}, 7")
        if LDS_MX: a(f"s_add_u32 s{sT0}, s{sT0}, {LDS_MX}")
        a(f"v_add_u32 v{MX+8+j}, s{sT0}, v{t2}")
    for j in range(8):
        a(f"v_add_u32 v{t0}, s{sRB}, v{MX+8+j}")
        a(f"ds_write_b32 v{t0}, v{MX+j}")
    lds_sync(a, vCNT, t0, sT0, 8, 4, f"{name}_s2")
    for j in range(8):
        for ww in range(4):
            a(f"ds_read_b32 v{MX+16+4*j+ww}, v{MX+8+j} offset:{ww*18432}")
    a("s_waitcnt lgkmcnt(0)")
    a(f"s_mov_b64 exec, {sr(sE_HI,2)}")
    for j in range(8):
        b = MX+16+4*j
        a(f"v_max3_f32 v{b}, v{b}, v{b+1}, v{b+2}")
        a(f"v_max_f32 v{b}, v{b}, v{b+3}")
        a(f"v_sub_f32 v{b}, 0, v{b}")
        a(f"v_and_b32 v{b+1}, 0xffff0000, v{b}")
        a(f"v_sub_f32 v{b}, v{b}, v{b+1}")
        a(f"v_and_b32 v{b+2}, 0xffff0000, v{b}")
        a(f"v_sub_f32 v{b}, v{b}, v{b+2}")
        a(f"v_lshrrev_b32 v{b+1}, 16, v{b+1}")
        a(f"v_or_b32 v{Q(j)+4}, v{b+1}, v{b+2}")
        a(f"v_lshrrev_b32 v{Q(j)+5}, 16, v{b}")
    a("s_mov_b64 exec, -1")
    zeroO()
    for x in kvaddr(): a(x)
    a(f"s_branch {name}_M")
    a.label(f"{name}_G")
    a(f"s_setprio {prio_va}")
    a(f"v_mov_b32 v6, 0")
    a(f"v_mov_b32 v7, 0")
    a(f"ds_write_b64 v{vCNT}, v[6:7]")
    a(f"ds_write_b64 v{vCNT}, v[6:7] offset:8")
    a(f"ds_write_b64 v{vCNT}, v[6:7] offset:16")
    WO, OUT = 52, 56
    sDT, sFT, sH0, sH1, sWo, sM, sCnt, sDB, sFB, sST2, sDT2, sU, sW2, sFL = 32, 33, 34, 35, 36, 38, 39, 40, 41, 42, 43, 44, 45, 46
    sK1, sK2, sR0, sR1, sK3 = 47, 48, 49, 50, 51
    sWO, sXO = 24, 25
    vDA0, vDA1, vBO, vR0, vR1 = 5, 6, 7, 8, 9
    t0, t1, t2, t3 = 10, 11, 12, 13
    vXO, vLA, XB = 14, 19, 24
    Z = 36
    AF = lambda s: 40 + 8*s
    vU0, vU2, vD0, vD1, vQ0, vQ1, vFL = 56, 57, 58, 59, 60, 61, 62
    BF = lambda s: 64 + 8*s
    BI = 128; vDWp = 136; vB2 = 141
    vDW = (5, 6, 8, 9, 39)
    ACC = 160
    assert R == 4 and R2 == 4
    a(f"s_mul_i32 s{sT0}, s{sJ}, 52")
    a(f"s_lshr_b32 s{sT0}, s{sT0}, 8")
    a(f"s_mul_i32 s{sT1}, s{sT0}, 5")
    a(f"s_sub_u32 s{sT1}, s{sJ}, s{sT1}")
    a(f"s_and_b32 s{sT2}, s{sXC}, 1")
    a(f"s_mul_i32 s{sT3}, s{sT2}, 5")
    a(f"s_add_u32 s{sDT}, s{sT1}, s{sT3}")
    a(f"s_lshl_b32 s{sT2}, s{sT2}, 2")
    a(f"s_lshr_b32 s{sT3}, s{sJ}, 3")
    a(f"s_add_u32 s{sDT2}, s{sT2}, s{sT3}")
    a(f"s_lshr_b32 s{sT2}, s{sXC}, 1")
    a(f"s_mul_i32 s{sT3}, s{sT2}, 6")
    a(f"s_add_u32 s{sFT}, s{sT0}, s{sT3}")
    a(f"s_lshl_b32 s{sT2}, s{sT2}, 3")
    a(f"s_and_b32 s{sT3}, s{sJ}, 7")
    a(f"s_add_u32 s{sST2}, s{sT2}, s{sT3}")
    a(f"s_and_b32 s{sT0}, s{sW}, 1")
    a(f"s_lshl_b32 s{sT1}, s{sDT}, 1")
    a(f"s_add_u32 s{sDB}, s{sT1}, s{sT0}")
    a(f"s_xor_b32 s{sT2}, s{sDB}, 1")
    a(f"s_lshl_b32 s{sT3}, s{sW}, 15")
    a(f"s_add_u32 s{sT3}, s{sT3}, {WS_HT}")
    a(f"s_lshl_b32 s{sH0}, s{sDB}, 17")
    a(f"s_add_u32 s{sH0}, s{sH0}, s{sT3}")
    a(f"s_lshl_b32 s{sH1}, s{sT2}, 17")
    a(f"s_add_u32 s{sH1}, s{sH1}, s{sT3}")
    a(f"s_mul_i32 s{sWo}, s{sW}, {512*3072}")
    a(f"s_lshl_b32 s{sT0}, s{sFT}, 7")
    a(f"s_add_u32 s{sWo}, s{sWo}, s{sT0}")
    a(f"s_mul_i32 s{sM}, s{sW}, {GREG}")
    a(f"s_add_u32 s{sM}, s{sM}, {LDS_G}")
    a(f"s_mul_i32 s{sU}, s{sDT2}, {5*96*512}")
    a(f"s_mul_i32 s{sT0}, s{sW}, {24*512}")
    a(f"s_add_u32 s{sU}, s{sU}, s{sT0}")
    a(f"s_add_u32 s{sU}, s{sU}, {WS_U}")
    a(f"s_mul_i32 s{sW2}, s{sW}, {384*4096}")
    a(f"s_lshl_b32 s{sT0}, s{sST2}, 7")
    a(f"s_add_u32 s{sW2}, s{sW2}, s{sT0}")
    a(f"s_mul_i32 s{sT0}, s{sDT2}, 5")
    a(f"s_lshr_b32 s{sT0}, s{sT0}, 1")
    a(f"s_mul_i32 s{sT0}, s{sT0}, 48")
    a(f"s_mul_i32 s{sT1}, s{sW}, 12")
    a(f"s_add_u32 s{sT0}, s{sT0}, s{sT1}")
    a(f"s_lshl_b32 s{sT0}, s{sT0}, 6")
    a(f"s_add_u32 s{sFL}, s{sT0}, {WS_FLG}")
    a(f"s_mul_i32 s{sT1}, s{sDT2}, 160")
    a(f"s_mul_i32 s{sWO}, s{sW}, {160*1280}")
    a(f"s_add_u32 s{sWO}, s{sWO}, s{sT1}")
    a(f"s_mul_i32 s{sXO}, s{sST2}, {64*1280}")
    a(f"s_add_u32 s{sXO}, s{sXO}, s{sT1}")
    if rot:
        a(f"s_mul_i32 s{sT2}, s{sJ}, 52")
        a(f"s_lshr_b32 s{sT2}, s{sT2}, 8")
        a(f"s_mul_i32 s{sT3}, s{sT2}, 25")
        a(f"s_mul_i32 s{sK1}, s{sJ}, 6")
        a(f"s_sub_u32 s{sK1}, s{sK1}, s{sT3}")
        a(f"s_and_b32 s{sK1}, s{sK1}, 31")
        a(f"s_lshl_b32 s{sT2}, s{sK1}, 10")
        a(f"s_add_u32 s{sH0}, s{sH0}, s{sT2}")
        a(f"s_add_u32 s{sH1}, s{sH1}, s{sT2}")
        a(f"s_mul_i32 s{sT2}, s{sK1}, {16*3072}")
        a(f"s_add_u32 s{sWo}, s{sWo}, s{sT2}")
        a(f"s_lshr_b32 s{sT2}, s{sJ}, 3")
        a(f"s_lshl_b32 s{sT2}, s{sT2}, 1")
        a(f"s_and_b32 s{sT3}, s{sJ}, 7")
        a(f"s_add_u32 s{sT2}, s{sT2}, s{sT3}")
        a(f"s_and_b32 s{sT2}, s{sT2}, 7")
        a(f"s_mul_i32 s{sK2}, s{sT2}, 3")
        a(f"s_lshl_b32 s{sT2}, s{sK2}, 9")
        a(f"s_add_u32 s{sU}, s{sU}, s{sT2}")
        a(f"s_lshl_b32 s{sT2}, s{sK2}, 16")
        a(f"s_add_u32 s{sW2}, s{sW2}, s{sT2}")
        a(f"s_mov_b32 s{sK3}, s{sK2}")
    a(f"s_lshr_b32 s{sT0}, s{sW}, 1")
    a(f"s_lshl_b32 s{sT1}, s{sFT}, 1")
    a(f"s_add_u32 s{sFB}, s{sT1}, s{sT0}")
    a(f"v_lshlrev_b32 v{vBO}, 4, v{vL}")
    a(f"v_lshrrev_b32 v{t0}, 3, v{vL}")
    a(f"v_bfe_u32 v{t1}, v{vL}, 4, 1")
    a(f"v_lshlrev_b32 v{t3}, 2, v{t1}")
    a(f"v_and_b32 v{t2}, 7, v{vL}")
    a(f"v_xor_b32 v{t3}, v{t3}, v{t2}")
    a(f"v_lshlrev_b32 v{t3}, 4, v{t3}")
    a(f"v_mul_u32_u24 v{vDA0}, 3072, v{t0}")
    a(f"v_add_u32 v{vDA0}, v{vDA0}, v{t3}")
    a(f"v_add_u32 v{vDA1}, {8*3072}, v{vDA0}")
    a(f"v_lshl_add_u32 v{vD0}, v{t0}, 12, v{t3}")
    a(f"v_add_u32 v{vD1}, {8*4096}, v{vD0}")
    a(f"v_and_b32 v{t2}, 3, v{vL}")
    a(f"v_lshlrev_b32 v{t2}, 3, v{t2}")
    a(f"v_lshl_add_u32 v{t1}, v{t1}, 5, v{t2}")
    a(f"v_add_u32 v{t1}, s{sM}, v{t1}")
    a(f"v_bfe_u32 v{t0}, v{vL}, 2, 2")
    a(f"v_lshl_add_u32 v{t2}, v{vH}, 2, v{t0}")
    a(f"v_mul_u32_u24 v{t2}, 160, v{t2}")
    a(f"v_add_u32 v{t2}, 8192, v{t2}")
    a(f"v_add_u32 v146, v{t2}, v{t1}")
    a(f"v_mul_u32_u24 v{t2}, {36*160}, v{vH}")
    a(f"v_add_u32 v{t2}, {16*160}, v{t2}")
    a(f"v_add_u32 v147, v{t2}, v146")
    a(f"v_lshl_add_u32 v{t1}, v{t0}, 7, v{t1}")
    a(f"v_bfe_u32 v{t2}, v{vL}, 3, 1")
    a(f"v_lshl_add_u32 v{t0}, v{vH}, 9, v{t1}")
    a(f"v_lshl_add_u32 v{vQ0}, v{t2}, 6, v{t0}")
    a(f"v_xor_b32 v{vQ1}, 64, v{vQ0}")
    a(f"v_lshl_add_u32 v{t0}, v{vH}, 10, v{t1}")
    a(f"v_xor_b32 v{t2}, s{sT0}, v{t2}")
    a(f"v_lshl_add_u32 v{vR0}, v{t2}, 6, v{t0}")
    a(f"v_xor_b32 v{vR1}, 64, v{vR0}")
    assert LDS_G % 128 == 0 and GREG % 128 == 0
    a(f"v_and_b32 v{t1}, 15, v{vI}")
    a(f"v_lshlrev_b32 v{t1}, 4, v{t1}")
    a(f"v_lshl_add_u32 v{vU2}, v{vH}, 8, v{t1}")
    a(f"v_lshrrev_b32 v{t0}, 4, v{vI}")
    a(f"v_mul_u32_u24 v{t0}, {96*512}, v{t0}")
    a(f"v_add_u32 v{vU0}, v{vU2}, v{t0}")
    a(f"v_mul_u32_u24 v{t0}, 43, v{vL}")
    a(f"v_lshrrev_b32 v{t0}, 9, v{t0}")
    a(f"v_mul_u32_u24 v{t0}, 36, v{t0}")
    a(f"v_add_u32 v{t0}, v{t0}, v{vL}")
    a(f"v_lshlrev_b32 v{vFL}, 6, v{t0}")
    for j in range(5):
        a(f"v_add_u32 v{t0}, {64*j}, v{vL}")
        a(f"v_mul_u32_u24 v{t1}, 6554, v{t0}")
        a(f"v_lshrrev_b32 v{t1}, 16, v{t1}")
        a(f"v_mul_u32_u24 v{t2}, {1280-160}, v{t1}")
        a(f"v_lshl_add_u32 v{vDWp+j}, v{t0}, 4, v{t2}")
    a(f"v_and_b32 v{t3}, 0xff, v0")
    for k in range(5):
        a(f"v_add_u32 v{t0}, {256*k}, v{t3}")
        a(f"v_mul_u32_u24 v{t1}, 3277, v{t0}")
        a(f"v_lshrrev_b32 v{t1}, 16, v{t1}")
        a(f"v_mul_u32_u24 v{t2}, {1280-160}, v{t1}")
        a(f"v_lshl_add_u32 v{vXO+k}, v{t0}, 3, v{t2}")
        a(f"v_lshlrev_b32 v{t2}, 4, v{t1}")
        a(f"v_lshl_add_u32 v{t2}, v{t0}, 4, v{t2}")
        a(f"v_add_u32 v{vLA+k}, {LDS_G}, v{t2}")
        a(f"v_lshlrev_b32 v{vB2+k}, 1, v{t1}")
    a(f"v_lshlrev_b32 v{t3}, 3, v{vH}")
    for k in range(4): a(f"v_mov_b32 v{Z+k}, 0")
    a("s_waitcnt lgkmcnt(0)")
    srd(a, WS, 8, WS_SIZE)
    srd(a, W1, 72, 2048*1536*2)
    srd(a, B1, 74, 1536*2)
    srd(a, W2, 76, 1536*2048*2)
    srd(a, B2, 78, 2048*2)
    srd(a, X, 4, 2048*640*2)
    srd(a, WO, 6, 640*640*2)
    srd(a, OUT, 26, 2048*640*2)
    a("s_barrier")
    if not do_gemm: a("s_endpgm")
    a(f"s_cmp_ge_u32 s{sJ}, 30")
    a(f"s_cbranch_scc1 {name}_G2")
    def gload(slot):
        return [f"s_add_u32 m0, s{sM}, {slot*2048}",
                f"buffer_load_dwordx4 {vr(BF(slot),4)}, v{vBO}, {sr(WS,4)}, s{sH0} offen",
                f"buffer_load_dwordx4 v{vDA0}, {sr(W1,4)}, s{sWo} offen lds",
                f"s_add_u32 m0, s{sM}, {slot*2048+1024}",
                f"buffer_load_dwordx4 {vr(BF(slot)+4,4)}, v{vBO}, {sr(WS,4)}, s{sH1} offen",
                f"buffer_load_dwordx4 v{vDA1}, {sr(W1,4)}, s{sWo} offen lds",
                f"s_add_u32 s{sH0}, s{sH0}, 1024",
                f"s_add_u32 s{sH1}, s{sH1}, 1024",
                f"s_add_u32 s{sWo}, s{sWo}, {16*3072}"] + ([
                f"s_add_u32 s{sK1}, s{sK1}, 1",
                f"s_cmp_eq_u32 s{sK1}, 32",
                f"s_cselect_b32 s{sR0}, {32*1024}, 0",
                f"s_cselect_b32 s{sR1}, {32*16*3072}, 0",
                f"s_sub_u32 s{sH0}, s{sH0}, s{sR0}",
                f"s_sub_u32 s{sH1}, s{sH1}, s{sR0}",
                f"s_sub_u32 s{sWo}, s{sWo}, s{sR1}"] if rot else [])
    a(f"s_lshl_b32 s{sT1}, s{sFB}, 6")
    for i in range(4):
        a(f"buffer_load_dwordx2 {vr(BI+2*i,2)}, v{t3}, {sr(B1,4)}, s{sT1} offen offset:{16*i}")
    a(f"s_setprio {prio_mm}")
    for n in range(R-1):
        for x in gload(n): a(x)
    for k in range(4): a(f"v_mfma_f32_32x32x16_bf16 {vr(ACC+16*k,16)}, {vr(Z,4)}, {vr(Z,4)}, 0")
    def trs(slot, s):
        return [f"ds_read_b64_tr_b16 {vr(AF(s)+4*fb+2*h,2)}, v{vR0+fb} offset:{slot*2048+h*512}" for fb in range(2) for h in range(2)]
    a.stamp(1)
    a(f"s_waitcnt vmcnt({4*(R-2)})")
    for x in trs(0, 0): a(x)
    a(f"s_mov_b32 s{sCnt}, {32//R - 1}")
    def gbody(last):
        for n in range(R):
            if (not last or n == 0) and 'L' not in xp:
                for x in gload((n-1) % R): a(x)
            if not last or n < R-1:
                a(f"s_waitcnt vmcnt({4*(R-2-(n if last else 0))})")
                for x in trs((n+1) % R, (n+1) % 2): a(x)
                a("s_waitcnt lgkmcnt(4)")
            else:
                a("s_waitcnt lgkmcnt(0)")
            for fb in range(2):
                for db in range(2):
                    C = ACC + 16*(2*fb+db)
                    if 'M' not in xp: a(f"v_mfma_f32_32x32x16_bf16 {vr(C,16)}, {vr(AF(n%2)+4*fb,4)}, {vr(BF(n)+4*db,4)}, {vr(C,16)}")
    a.label(f"{name}_GL")
    gbody(False)
    a(f"s_sub_u32 s{sCnt}, s{sCnt}, 1")
    a(f"s_cmp_lg_u32 s{sCnt}, 0")
    a(f"s_cbranch_scc1 {name}_GL")
    gbody(True)
    a.stamp(2)
    a(f"s_setprio {prio_va}")
    a(f"v_add_u32 v{t0}, s{sM}, v{vBO}")
    for p in range(1, 4):
        a(f"s_xor_b32 s{sT1}, s{sW}, {p}")
        a(f"s_mul_i32 s{sT1}, s{sT1}, {GREG}")
        a(f"s_add_u32 s{sT1}, s{sT1}, {LDS_G + 8192 + (p-1)*4096}")
        a(f"v_add_u32 v{t0+p}, s{sT1}, v{vBO}")
    for p in range(1, 4):
        for k in range(4):
            a(f"ds_write_b128 v{t0}, {vr(ACC+16*p+4*k,4)} offset:{8192+(p-1)*4096+k*1024}")
    lds_arrive(a, vCNT, t0, 4)
    BU = 112
    for i in range(8):
        a(f"v_lshlrev_b32 v{BU+2*i}, 16, v{BI+i}")
        a(f"v_and_b32 v{BU+2*i+1}, 0xffff0000, v{BI+i}")
    for k in range(0, 16, 2):
        a(f"v_pk_add_f32 {vr(ACC+k,2)}, {vr(ACC+k,2)}, {vr(BU+k,2)}")
    a(f"s_mul_i32 s{sT0}, s{sDB}, {2*96*512}")
    a(f"s_lshl_b32 s{sT1}, s{sFB}, 10")
    a(f"s_add_u32 s{sT0}, s{sT0}, s{sT1}")
    a(f"s_add_u32 s{sH0}, s{sT0}, {WS_U}")
    a(f"s_mul_i32 s{sT3}, s{sDB}, 48")
    a(f"s_add_u32 s{sT3}, s{sT3}, s{sFB}")
    a(f"s_lshl_b32 s{sT3}, s{sT3}, 6")
    a(f"s_add_u32 s{sH1}, s{sT3}, {WS_FLG}")
    k0 = -2*math.sqrt(2/math.pi)*math.log2(math.e)
    a(f"v_mov_b32 v{BU}, {hexf(k0*0.044715)}")
    a(f"v_mov_b32 v{BU+1}, {hexf(k0*0.044715)}")
    a(f"v_mov_b32 v{BU+2}, {hexf(k0)}")
    a(f"v_mov_b32 v{BU+3}, {hexf(k0)}")
    vm = VM(a)
    def w2dma(g):
        slot = g % R2
        for x in [f"s_add_u32 m0, s{sM}, {slot*2048}", "s_nop 0",
                f"buffer_load_dwordx4 v{vD0}, {sr(W2,4)}, s{sW2} offen lds",
                f"s_add_u32 m0, s{sM}, {slot*2048+1024}", f"s_nop 0",
                f"buffer_load_dwordx4 v{vD1}, {sr(W2,4)}, s{sW2} offen lds",
                f"s_add_u32 s{sW2}, s{sW2}, {16*4096}"] + ([
                f"s_add_u32 s{sK2}, s{sK2}, 1",
                f"s_cmp_eq_u32 s{sK2}, 24",
                f"s_cselect_b32 s{sR0}, {24*16*4096}, 0",
                f"s_sub_u32 s{sW2}, s{sW2}, s{sR0}"] if rot else []): a(x)
        vm.issue(g, 2)
    lds_wait(a, vCNT, t0, sT1, 4, 4, f"{name}_s1")
    RB = 64
    for p in range(1, 4):
        for k in range(4):
            a(f"ds_read_b128 {vr(RB+16*(p-1)+4*k,4)}, v{t0+p} offset:{k*1024}")
    for p in range(1, 4):
        a(f"s_waitcnt lgkmcnt({(3-p)*4})")
        for k in range(0, 16, 2):
            a(f"v_pk_add_f32 {vr(ACC+k,2)}, {vr(ACC+k,2)}, {vr(RB+16*(p-1)+k,2)}")
    lds_arrive(a, vCNT, t0, 12)
    G = RB
    for k in range(0, 16, 2): a(f"v_pk_mul_f32 {vr(G+k,2)}, {vr(ACC+k,2)}, {vr(ACC+k,2)}")
    for k in range(0, 16, 2): a(f"v_pk_fma_f32 {vr(G+k,2)}, {vr(G+k,2)}, {vr(BU,2)}, {vr(BU+2,2)}")
    for k in range(0, 16, 2): a(f"v_pk_mul_f32 {vr(G+k,2)}, {vr(G+k,2)}, {vr(ACC+k,2)}")
    for k in range(16): a(f"v_exp_f32 v{G+k}, v{G+k}")
    for k in range(0, 16, 2): a(f"v_pk_add_f32 {vr(G+k,2)}, {vr(G+k,2)}, 1.0 op_sel_hi:[1,0]")
    for k in range(16): a(f"v_rcp_f32 v{G+k}, v{G+k}")
    for k in range(0, 16, 2): a(f"v_pk_mul_f32 {vr(G+k,2)}, {vr(G+k,2)}, {vr(ACC+k,2)}")
    for k in range(8): a(f"v_cvt_pk_bf16_f32 v{G+16+k}, v{G+2*k}, v{G+2*k+1}")
    a(f"buffer_store_dwordx4 {vr(G+16,4)}, v{vU0}, {sr(WS,4)}, s{sH0} offen sc1")
    a(f"buffer_store_dwordx4 {vr(G+20,4)}, v{vU0}, {sr(WS,4)}, s{sH0} offen offset:512 sc1")
    a(f"v_mov_b32 v{t1}, 1")
    a(f"v_mov_b32 v{t2}, 0")
    for g in range(R2-1): w2dma(g)
    a(f"s_waitcnt vmcnt({2*(R2-1)})")
    a("s_mov_b64 exec, 1")
    a(f"buffer_store_dword v{t1}, v{t2}, {sr(WS,4)}, s{sH1} offen sc1")
    a("s_mov_b64 exec, -1")
    lds_wait(a, vCNT, t0, sT1, 12, 4, f"{name}_s3")
    a.stamp(3)
    a(f"s_branch {name}_G3")
    a.label(f"{name}_G2")
    for g in range(R2-1): w2dma(g)
    a.label(f"{name}_G3")
    UF = lambda s: 64 + 12*s
    def uload(g):
        U = UF(g % R2)
        for x in [f"s_add_u32 s{sT0}, s{sU}, {2*96*512}",
                f"s_add_u32 s{sT1}, s{sU}, {4*96*512}",
                f"buffer_load_dwordx4 {vr(U,4)}, v{vU0}, {sr(WS,4)}, s{sU} offen sc1",
                f"buffer_load_dwordx4 {vr(U+4,4)}, v{vU0}, {sr(WS,4)}, s{sT0} offen sc1",
                f"s_mov_b64 exec, s[72:73]",
                f"buffer_load_dwordx4 {vr(U+8,4)}, v{vU2}, {sr(WS,4)}, s{sT1} offen sc1",
                f"s_mov_b64 exec, -1",
                f"s_add_u32 s{sU}, s{sU}, 512"] + ([
                f"s_add_u32 s{sK3}, s{sK3}, 1",
                f"s_cmp_eq_u32 s{sK3}, 24",
                f"s_cselect_b32 s{sR0}, {24*512}, 0",
                f"s_sub_u32 s{sU}, s{sU}, s{sR0}"] if rot else []): a(x)
        vm.issue(g, 3)
    for k in range(6): a(f"v_mfma_f32_32x32x16_bf16 {vr(ACC+16*k,16)}, {vr(Z,4)}, {vr(Z,4)}, 0")
    a("s_mov_b32 s72, 0xffff")
    a("s_mov_b32 s73, 0xffff")
    for s_ in range(R2):
        for k in range(4): a(f"v_mov_b32 v{UF(s_)+8+k}, 0")
    for k in range(5): a(f"v_mov_b32 v{vDW[k]}, v{vDWp+k}")
    a(f"s_lshl_b32 s{sT3}, s{sST2}, 7")
    for k in range(5):
        a(f"buffer_load_dwordx2 {vr(XB+2*k,2)}, v{vXO+k}, {sr(X,4)}, s{sXO} offen")
        a(f"buffer_load_ushort v{XB+10+k}, v{vB2+k}, {sr(B2,4)}, s{sT3} offen")
    def poll(lab, voff, soff, lo, hi):
        a(f"s_mov_b32 s{sCnt}, 0x40000")
        a(f"s_mov_b32 exec_lo, {lo}")
        a(f"s_mov_b32 exec_hi, {hi}")
        a.label(f"{lab}L")
        a(f"buffer_load_dword v{35 if lab.endswith('O') else 63}, v{voff}, {sr(WS,4)}, s{soff} offen sc1")
        a(f"s_sub_u32 s{sCnt}, s{sCnt}, 1")
        a("s_waitcnt vmcnt(0)")
        a(f"v_cmp_ne_u32 vcc, 1, v{35 if lab.endswith('O') else 63}")
        a(f"s_cbranch_scc1 {lab}X")
        a.nop(4)
        a(f"s_cbranch_vccz {lab}X")
        a(f"s_sleep {slpo if lab.endswith('O') else slp}")
        a(f"s_branch {lab}L")
        a.label(f"{lab}X")
        a("s_mov_b64 exec, -1")
        vm.q = []
    poll(f"{name}_PU", vFL, sFL, -1, 15)
    a.stamp(4)
    a(f"s_setprio {prio_mm}")
    for g in range(R2-1): uload(g)
    def tr2(g):
        for sb in range(2):
            for aa in range(2):
                a(f"ds_read_b64_tr_b16 {vr(AF(g%2)+4*sb+2*aa,2)}, v{vQ0+sb} offset:{(g%R2)*2048+aa*1024}")
    def C(db, sb): return ACC + 16*(2*db+sb)
    def wdma(jj, tag):
        a(f"s_add_u32 m0, s{sM}, {8192 + jj*1024}")
        if jj % 5 == 0 and jj: a(f"s_add_u32 s{sWO}, s{sWO}, {32*1280}")
        else: a("s_nop 0")
        a(f"buffer_load_dwordx4 v{vDW[jj % 5]}, {sr(WO,4)}, s{sWO} offen lds")
        if jj == 12: a(f"s_add_u32 s{sWO}, s{sWO}, {16*1280}")
        vm.issue(tag, 1)
    tr2(0)
    for g in range(24):
        if g + R2 - 1 < 24:
            if 'L' in xp: vm.issue(g + R2 - 1, 0); vm.q.append(g + R2 - 1)
            else: w2dma(g + R2 - 1); uload(g + R2 - 1)
        if 4 <= g < 17: wdma(g - 4, "wa")
        if g == 0: vm.wait(0)
        if g < 23:
            vm.wait(g+1)
            tr2(g+1)
            a("s_waitcnt lgkmcnt(4)")
        else:
            a("s_waitcnt lgkmcnt(0)")
        for db in range(3):
            for sb in range(2):
                if 'M' not in xp and not ('W' in xp and db == 2 and g % 2): a(f"v_mfma_f32_32x32x16_bf16 {vr(C(db,sb),16)}, {vr(UF(g%R2)+4*db,4)}, {vr(AF(g%2)+4*sb,4)}, {vr(C(db,sb),16)}")
    a.stamp(5); a.rstamp(0)
    a(f"s_setprio {prio_va}")
    vRM, vRL, vOL, vOF = t0, t1, t2, t3
    a(f"v_mov_b32 v{vRM}, v146")
    a(f"v_mov_b32 v{vRL}, v147")
    a(f"v_lshlrev_b32 v{vOL}, 3, v{vI}")
    a(f"v_lshl_add_u32 v{vOL}, v{vH}, 9, v{vOL}")
    a(f"v_lshlrev_b32 v{vOF}, 11, v{vL}")
    WA = lambda k: 100 + 12*k
    def tr1(k):
        for db in range(3):
            for aa in range(2):
                if k < 4: a(f"ds_read_b64_tr_b16 {vr(WA(k)+4*db+2*aa,2)}, v{vRM} offset:{(20*k+8*aa)*160+db*64}")
                else: a(f"ds_read_b64_tr_b16 {vr(WA(k)+4*db+2*aa,2)}, v{vRL} offset:{20*aa*160+db*64}")
    for k in range(5): tr1(k)
    sO, sOL, sOF = sH0, sH1, sU
    a(f"s_lshl_b32 s{sT0}, s{sST2}, 6")
    a(f"s_lshl_b32 s{sT1}, s{sW}, 3")
    a(f"s_add_u32 s{sT0}, s{sT0}, s{sT1}")
    a(f"s_lshl_b32 s{sOL}, s{sT0}, 8")
    a(f"s_add_u32 s{sOL}, s{sOL}, {WS_OL}")
    a(f"s_lshl_b32 s{sO}, s{sT0}, 10")
    a(f"s_add_u32 s{sO}, s{sO}, {WS_O}")
    a(f"s_lshl_b32 s{sT1}, s{sT1}, 5")
    a(f"s_add_u32 s{sT1}, s{sT1}, s{sST2}")
    a(f"s_lshl_b32 s{sT1}, s{sT1}, 6")
    a(f"s_add_u32 s{sOF}, s{sT1}, {WS_OFL}")
    a("s_waitcnt lgkmcnt(0)")
    for jj in range(13): wdma(jj, "wb")
    vBB = (5, 6, 8, 9, 34)
    for k in range(5): a(f"v_lshlrev_b32 v{vBB[k]}, 16, v{XB+10+k}")
    if eprio: a("s_setprio 2")
    poll(f"{name}_PO", vOF, sOF, 0xf if split else 0xff, 0)
    a.stamp(6); a.rstamp(1)
    OFr = lambda n: 36 + 8*(n % 8)
    def oload(n):
        half, k = divmod(n, 5)
        for sb in range(2):
            if k < 4:
                a(f"s_add_u32 s{sT0}, s{sO}, {(4*half + k)*1024 + sb*32768}")
                a(f"buffer_load_dwordx4 {vr(OFr(n)+4*sb,4)}, v{vBO}, {sr(WS,4)}, s{sT0} offen sc1")
                vm.issue(n, 1)
            else:
                a(f"s_add_u32 s{sT0}, s{sOL}, {4*half*256 + sb*8192}")
                a(f"buffer_load_dwordx2 {vr(OFr(n)+4*sb,2)}, v{vOL}, {sr(WS,4)}, s{sT0} offen sc1")
                a(f"buffer_load_dwordx2 {vr(OFr(n)+4*sb+2,2)}, v{vOL}, {sr(WS,4)}, s{sT0} offen offset:256 sc1")
                vm.issue(n, 2)
    def ostep(n):
        if n in vm.q: vm.wait(n)
        if n == 0: a.rstamp(2)
        if n == 7: a.rstamp(3)
        if n == 9: a.rstamp(4)
        if n >= 5: a(f"s_waitcnt lgkmcnt({min(15, 6*(9-n))})")
        for db in range(3):
            for sb in range(2):
                a(f"v_mfma_f32_32x32x16_bf16 {vr(C(db,sb),16)}, {vr(WA(n%5)+4*db,4)}, {vr(OFr(n)+4*sb,4)}, {vr(C(db,sb),16)}")
    if not split:
        for n in range(8): oload(n)
        for n in range(10):
            ostep(n)
            if n < 2: oload(n + 8)
            if n < 5: tr1(n)
    else:
        a("s_mov_b64 exec, 0xf0")
        a(f"buffer_load_dword v35, v{vOF}, {sr(WS,4)}, s{sOF} offen sc1")
        a("s_mov_b64 exec, -1")
        vm.issue("pb", 1)
        for n in range(5): oload(n)
        vm.wait("pb")
        a("s_mov_b64 exec, 0xf0")
        a("v_cmp_ne_u32 vcc, 1, v35")
        a("s_mov_b64 exec, -1")
        a.nop(4)
        a(f"s_cbranch_vccnz {name}_TB")
        q0 = list(vm.q)
        for n in range(5, 8): oload(n)
        for n in range(10):
            ostep(n)
            if n < 2: oload(n + 8)
            if n < 5: tr1(n)
        a(f"s_branch {name}_TE")
        a.label(f"{name}_TB")
        vm.q = q0
        for n in range(5):
            ostep(n); tr1(n)
        poll(f"{name}_PO2O", vOF, sOF, 0xf0, 0)
        for n in range(5, 10): oload(n)
        for n in range(5, 10): ostep(n)
        a.label(f"{name}_TE")
    a(f"v_mul_u32_u24 v{t0}, 336, v{vI}")
    a(f"v_lshl_add_u32 v{t0}, v{vH}, 4, v{t0}")
    a(f"v_add_u32 v{t0}, s{sM}, v{t0}")
    XU = 40
    for k in range(5):
        a(f"v_add_u32 v{60+k}, {2*GREG}, v{vLA+k}")
    for k in range(1):
        pass
    for db in range(3):
        for sb in range(2):
            for i in range(4 if db < 2 else 2):
                a(f"ds_write_b128 v{t0}, {vr(C(db,sb)+4*i,4)} offset:{sb*32*336 + (32*db+8*i)*4}")
    lds_arrive(a, vCNT, t0, 16)
    for k in range(5):
        b = XU + 4*k
        a(f"v_lshlrev_b32 v{b}, 16, v{XB+2*k}")
        a(f"v_and_b32 v{b+1}, 0xffff0000, v{XB+2*k}")
        a(f"v_lshlrev_b32 v{b+2}, 16, v{XB+2*k+1}")
        a(f"v_and_b32 v{b+3}, 0xffff0000, v{XB+2*k+1}")
        for i in range(4): a(f"v_add_f32 v{b+i}, v{b+i}, v{vBB[k]}")
    a.rstamp(5)
    lds_wait(a, vCNT, t0, sT1, 16, 4, f"{name}_s4")
    a.rstamp(6)
    RB = 68
    for k in range(5):
        a(f"ds_read_b128 {vr(RB+16*k,4)}, v{vLA+k}")
        a(f"ds_read_b128 {vr(RB+16*k+4,4)}, v{vLA+k} offset:{GREG}")
        a(f"ds_read_b128 {vr(RB+16*k+8,4)}, v{60+k}")
        a(f"ds_read_b128 {vr(RB+16*k+12,4)}, v{60+k} offset:{GREG}")
    for k in range(5):
        b = XU + 4*k; r = RB + 16*k
        a(f"s_waitcnt lgkmcnt({min(15, 4*(4-k))})")
        for i in range(0, 4, 2):
            a(f"v_pk_add_f32 {vr(r+i,2)}, {vr(r+i,2)}, {vr(r+4+i,2)}")
            a(f"v_pk_add_f32 {vr(r+8+i,2)}, {vr(r+8+i,2)}, {vr(r+12+i,2)}")
            a(f"v_pk_add_f32 {vr(b+i,2)}, {vr(b+i,2)}, {vr(r+i,2)}")
            a(f"v_pk_add_f32 {vr(b+i,2)}, {vr(b+i,2)}, {vr(r+8+i,2)}")
        a(f"v_cvt_pk_bf16_f32 v{b}, v{b}, v{b+1}")
        a(f"v_cvt_pk_bf16_f32 v{b+1}, v{b+2}, v{b+3}")
        a(f"buffer_store_dwordx2 {vr(b,2)}, v{vXO+k}, {sr(OUT,4)}, s{sXO} offen {otf}")
    a.rstamp(7)
    if diag: a("s_waitcnt vmcnt(0)")
    a.stamp(7); a.stamp(9, True)
    a.dump_stamps(10, WS, sWV, WS_DIAG)
    a.label(f"{name}_end")
    a("s_endpgm")
    return a, dict(vgpr=256, sgpr=102, lds=LDS_TOT, grid=256, block=512)
```

```python
from asmlib import *
from layout import *
from k1 import srd, allreduce32, bf16r
from k2 import lds_arrive, lds_wait, lds_sync
import math
LDS_X = 65536
LDS_CS = 131072
LDS_ST = LDS_CS + 512
LDS_S8 = LDS_ST + 1024
LDS_MISC = LDS_S8 + 64
LDS_AX = 0
LDS_G = 73728
GREG = 21504
LDS_CNT = LDS_G + 4*GREG
LDS_TOT = LDS_CNT + 96
THRESH = 60.0
NON = 100
def gen_kf(name, diag=False, rt=False, prio_mm=0, prio_va=3, slp=4, slpo=1, otf='', xp='', ldf='sc1', gearly=True, rt2=False, spos=8, slp0=0, rep='xcd', FS=7, slpq=1, ghold=0, cprio=True, mpoll=True,
           pat='1aeeee2eeeecc3bcceeee4deeeecccc'):
    a = Asm(); a.diag = diag; a.rt = rt
    def st2(i):
        if rt2: a.lines.append(f"s_memrealtime s[{80+2*i}:{81+2*i}]")
    stf = 'sc1'; sfirst = True; R = R2 = 4; rot = False; eprio = True; split = True; do_gemm = True; kv = 'ring'
    def poll64(lab, vd, voff, soff, lo, hi, sleep, sCnt, first=True, srdn=20):
        a(f"s_mov_b32 s{sCnt}, 0x40000")
        a(f"s_mov_b32 exec_lo, {lo}")
        a(f"s_mov_b32 exec_hi, {hi}")
        if not first: a(f"s_branch {lab}C")
        a.label(f"{lab}L")
        a(f"buffer_load_dwordx2 {vr(vd,2)}, v{voff}, {sr(srdn,4)}, s{soff} offen sc1")
        a("s_waitcnt vmcnt(0)")
        if not first: a.label(f"{lab}C")
        a(f"v_cmp_ne_u64 vcc, {sr(NON,2)}, {vr(vd,2)}")
        a(f"s_sub_u32 s{sCnt}, s{sCnt}, 1")
        a(f"s_cbranch_scc1 {lab}X")
        a.nop(3)
        a(f"s_cbranch_vccz {lab}X")
        a(f"s_sleep {sleep}")
        a(f"s_branch {lab}L")
        a.label(f"{lab}X")
        a("s_mov_b64 exec, -1")
    def raise_flag(vd, vz, soff):
        a(f"v_mov_b32 v{vd}, s{NON}")
        a(f"v_mov_b32 v{vd+1}, s{NON+1}")
        a(f"v_mov_b32 v{vz}, 0")
        a("s_mov_b64 exec, 1")
        a(f"buffer_store_dwordx2 {vr(vd,2)}, v{vz}, {sr(20,4)}, s{soff} offen sc1")
        a("s_mov_b64 exec, -1")
    sW, sMT, sNT = 3, 10, 11
    X, Wd, WS, DBG = 12, 16, 20, 44
    sXo, sWo, sMX, sMW = 24, 25, 26, 27
    sT0, sT1, sT2, sT3 = 28, 29, 30, 31
    sCol, sKS, sCnt, sWV = 32, 35, 36, 37
    vL = 1
    vXA = 2
    vWA = 6
    vXR = 10
    vWR = 14
    vWO = 18
    vSEL = 20
    vCS = 24
    vSQ = 32
    vF = 48
    vACC = 96
    vT = 160
    t0, t1, t2, t3 = vT+20, vT+21, vT+22, vT+23
    vI, vH = vT+24, vT+25
    s0, s1, s2_ = vT+50, vT+52, vT+54
    a.label(name)
    a(f"s_cmp_ge_u32 s2, 256")
    a(f"s_cbranch_scc1 {name}_end")
    a.stamp(0); a.stamp(8, True)
    a("s_load_dwordx4 s[4:7], s[0:1], 0")
    a("s_load_dwordx4 s[40:43], s[0:1], 72")
    a("s_load_dwordx8 s[72:79], s[0:1], 32")
    a("s_load_dwordx2 s[8:9], s[0:1], 16")
    a("s_load_dwordx2 s[50:51], s[0:1], 64")
    a("v_lshrrev_b32 v2, 6, v0")
    a(f"v_and_b32 v{vL}, 63, v0")
    a(f"v_readfirstlane_b32 s{sWV}, v2")
    a(f"s_and_b32 s{sT0}, s2, 7")
    a(f"s_lshr_b32 s{sT1}, s2, 3")
    a(f"s_and_b32 s{sW}, s{sWV}, 3")
    a(f"s_and_b32 s{sT2}, s{sT0}, 3")
    a(f"s_lshl_b32 s{sT2}, s{sT2}, 2")
    a(f"s_and_b32 s{sT3}, s{sT1}, 3")
    a(f"s_add_u32 s{sMT}, s{sT2}, s{sT3}")
    a(f"s_lshr_b32 s{sT0}, s{sT0}, 2")
    a(f"s_lshl_b32 s{sT0}, s{sT0}, 3")
    a(f"s_lshr_b32 s{sT1}, s{sT1}, 2")
    a(f"s_add_u32 s{sNT}, s{sT0}, s{sT1}")
    a(f"s_lshl_b32 s{sMX}, s{sW}, 14")
    a(f"s_add_u32 s{sMX}, s{sMX}, {LDS_X}")
    a(f"v_and_b32 v{vI}, 31, v{vL}")
    a(f"v_lshrrev_b32 v{vH}, 5, v{vL}")
    def last_arriver(vC, vT_, sT_, off, skip):
        a("s_mov_b64 exec, 1")
        a(f"v_mov_b32 v{vT_}, 1")
        a(f"ds_add_rtn_u32 v{vT_}, v{vC}, v{vT_} offset:{off}")
        a("s_mov_b64 exec, -1")
        a("s_waitcnt lgkmcnt(0)")
        a(f"v_readfirstlane_b32 s{sT_}, v{vT_}")
        a.nop(1)
        a(f"s_cmp_lg_u32 s{sT_}, 3")
        a(f"s_cbranch_scc1 {skip}")
    a(f"s_cmp_lt_u32 s{sWV}, 4")
    a(f"s_cbranch_scc1 {name}_C")
    a(f"s_mul_i32 s{sT0}, s{sNT}, 240")
    a(f"s_lshl_b32 s{sT1}, s{sNT}, 8")
    a(f"s_add_u32 s{sT1}, s{sT1}, {2560 - 11*256}")
    a(f"s_cmp_lt_u32 s{sNT}, 11")
    a(f"s_cselect_b32 s{sCol}, s{sT0}, s{sT1}")
    a(f"s_lshl_b32 s{sT0}, s{sMT}, 7")
    a(f"s_lshl_b32 s{sT2}, s{sW}, 5")
    a(f"s_add_u32 s{sT0}, s{sT0}, s{sT2}")
    a(f"s_mul_i32 s{sXo}, s{sT0}, 1280")
    sSTo = 38
    a(f"s_lshl_b32 s{sSTo}, s{sT0}, 4")
    a(f"s_add_u32 s{sSTo}, s{sSTo}, {WS_ST2}")
    a(f"s_mul_i32 s{sWo}, s{sW}, {16*3840}")
    a(f"s_add_u32 s{sWo}, s{sWo}, s{sCol}")
    a(f"s_lshl_b32 s{sMW}, s{sW}, 12")
    a(f"v_lshrrev_b32 v{t0}, 3, v{vL}")
    a(f"v_lshrrev_b32 v{t1}, 4, v{vL}")
    a(f"v_and_b32 v{t2}, 7, v{vL}")
    a(f"v_mul_u32_u24 v{t0}, 1280, v{t0}")
    for j in range(4):
        a(f"v_xor_b32 v{t3}, v{t2}, v{t1}")
        if j % 2: a(f"v_xor_b32 v{t3}, 4, v{t3}")
        a(f"v_lshl_add_u32 v{vXA+j}, v{t3}, 4, v{t0}")
        if j: a(f"v_add_u32 v{vXA+j}, {8*j*1280}, v{vXA+j}")
    a(f"v_and_b32 v{t2}, 15, v{vL}")
    a(f"v_lshlrev_b32 v{t3}, 2, v{t1}")
    a(f"v_xor_b32 v{t2}, v{t2}, v{t3}")
    a(f"v_mul_u32_u24 v{t0}, 3840, v{t1}")
    a(f"v_lshl_add_u32 v{vWA}, v{t2}, 4, v{t0}")
    for j in range(1, 4):
        a(f"v_add_u32 v{vWA+j}, {4*j*3840}, v{vWA}")
    a("s_waitcnt lgkmcnt(0)")
    srd(a, X, 4, 2048*640*2)
    srd(a, Wd, 6, 640*1920*2)
    vm = VM(a)
    def dma(stage):
        buf = stage % 4
        for j in range(4):
            a(f"s_add_u32 m0, s{sMW}, {buf*16384 + j*1024}\ns_nop 0\nbuffer_load_dwordx4 v{vWA+j}, {sr(Wd,4)}, s{sWo} offen lds")
            a(f"s_add_u32 m0, s{sMX}, {buf*4096 + j*1024}\ns_nop 0\nbuffer_load_dwordx4 v{vXA+j}, {sr(X,4)}, s{sXo} offen lds")
        a(f"s_add_u32 s{sXo}, s{sXo}, 128\ns_add_u32 s{sWo}, s{sWo}, {64*3840}")
        vm.issue(stage, 8)
    srd(a, DBG, 40, 256)
    E = vT + 30
    a(f"v_mov_b32 v{E+17}, 0")
    a(f"s_or_b32 s{sT0}, s2, s{sW}")
    a(f"s_cbranch_scc1 {name}_NN")
    a(f"s_memrealtime {sr(NON,2)}")
    a("s_waitcnt lgkmcnt(0)")
    a(f"s_or_b32 s{NON}, s{NON}, 1")
    a(f"v_mov_b32 v{E+18}, s{NON}")
    a(f"v_mov_b32 v{E+19}, s{NON+1}")
    a("s_mov_b64 exec, 1")
    a(f"buffer_store_dwordx2 {vr(E+18,2)}, v{E+17}, {sr(DBG,4)}, 0 offen sc1")
    a("s_mov_b64 exec, -1")
    a.label(f"{name}_NN")
    if touch == 3:
        TS = 52; sTo = 56; vTo = vT + 60
        a(f"s_lshr_b32 s{sT0}, s2, 3")
        a(f"s_cmp_lt_u32 s{sT0}, 8")
        for k in range(3): a(f"s_cselect_b32 s{TS+k}, s{X+k}, s{Wd+k}")
        a(f"s_mov_b32 s{TS+3}, 0x20000")
        a(f"s_movk_i32 s57, 128")
        a(f"s_cselect_b32 s57, s57, {64*3840}")
        a(f"s_cselect_b64 vcc, -1, 0")
        a(f"s_and_b32 s{sT1}, s2, 3")
        a(f"s_lshl_b32 s{sT1}, s{sT1}, 3")
        a(f"s_add_u32 s{sT1}, s{sT1}, s{sT0}")
        a(f"s_mul_i32 s{sT1}, s{sT1}, {64*1280}")
        a(f"s_sub_u32 s{sT2}, s{sT0}, 8")
        a(f"s_mul_i32 s{sT2}, s{sT2}, {4*3840}")
        a(f"s_bfe_u32 s{sT3}, s2, 0x10002")
        a(f"s_mul_i32 s{sT3}, s{sT3}, 1920")
        a(f"s_add_u32 s{sT2}, s{sT2}, s{sT3}")
        a(f"s_cmp_lt_u32 s{sT0}, 24")
        a(f"s_cselect_b32 s{sT2}, s{sT2}, 0x10000000")
        a(f"s_cmp_lt_u32 s{sT0}, 8")
        a(f"s_cselect_b32 s{sTo}, s{sT1}, s{sT2}")
        a(f"s_add_u32 s{sT0}, s{sW}, 2")
        a(f"s_mul_i32 s{sT0}, s{sT0}, s57")
        a(f"s_add_u32 s{sTo}, s{sTo}, s{sT0}")
        a(f"s_lshl_b32 s57, s57, 2")
        a(f"v_mul_u32_u24 v{vTo}, 1280, v{vL}")
        a(f"v_and_b32 v{vTo+1}, 15, v{vL}")
        a(f"v_lshlrev_b32 v{vTo+1}, 7, v{vTo+1}")
        a(f"v_add_u32 v{vTo+1}, v{vTo+1}, v{t0}")
        a(f"v_cndmask_b32 v{vTo}, v{vTo+1}, v{vTo}, vcc")
        def tch(k):
            a(f"buffer_load_dword v{vTo+2+k}, v{vTo}, {sr(TS,4)}, s{sTo} offen")
            a(f"s_add_u32 s{sTo}, s{sTo}, s57")
            vm.issue("t", 1)
    dma(0)
    if touch == 3 and tpos == 0: tch(0)
    dma(1)
    if touch == 3 and tpos == 1: tch(0)
    srd(a, WS, 42, WS_SIZE)
    a(f"v_mov_b32 v{E+16}, 0")
    a(f"v_mov_b32 v{E+15}, {LDS_CNT}")
    for k in (0, 1, 2, 3, 5, 6, 7, 8, 9): a(f"ds_write_b64 v{E+15}, {vr(E+16,2)} offset:{8*k}")
    a(f"v_bfe_u32 v{t0}, v{vL}, 2, 2")
    a(f"v_mul_u32_u24 v{t0}, 1280, v{t0}")
    a(f"v_lshrrev_b32 v{t1}, 4, v{vL}")
    a(f"v_lshl_add_u32 v{t0}, v{t1}, 5, v{t0}")
    a(f"v_and_b32 v{t1}, 3, v{vL}")
    a(f"v_lshl_add_u32 v{t0}, v{t1}, 3, v{t0}")
    a(f"s_lshl_b32 s{sT0}, s{sW}, 7")
    a(f"s_add_u32 s{sT0}, s{sT0}, {LDS_MISC}")
    a(f"v_add_u32 v{t0}, s{sT0}, v{t0}")
    a(f"s_cmp_lt_u32 s{sW}, 2")
    a(f"s_cselect_b32 s{sT3}, 8, 4")
    a(f"s_lshl_b32 s{sT0}, s{sT3}, 7")
    a(f"v_add_u32 v{t1}, s{sT0}, v{t0}")
    a(f"v_lshrrev_b32 v{t2}, 4, v{vL}")
    a(f"v_lshlrev_b32 v{t2}, 16, v{t2}")
    a(f"v_and_b32 v{t3}, 15, v{vL}")
    a(f"v_lshl_add_u32 v{t2}, v{t3}, 4, v{t2}")
    a(f"v_lshlrev_b32 v{t3}, 3, v{vL}")
    sG8, sH0, sH1, sH2 = 33, 34, 39, 48
    a(f"s_lshl_b32 s{sG8}, s{sMT}, 4")
    a(f"s_add_u32 s{sG8}, s{sG8}, s{sNT}")
    a(f"s_lshl_b32 s{sH0}, s{sG8}, 8")
    a(f"s_lshl_b32 s{sT1}, s{sW}, 18")
    a(f"s_add_u32 s{sH0}, s{sH0}, s{sT1}")
    a(f"s_add_u32 s{sH0}, s{sH0}, {WS_HT}")
    a(f"s_add_u32 s{sH1}, s{sH0}, {4<<18}")
    a(f"s_lshl_b32 s{sH2}, s{sT3}, 18")
    a(f"s_add_u32 s{sH2}, s{sH2}, s{sH0}")
    vm.wait(0)
    a("s_barrier")
    st2(0)
    a(f"ds_read_b64_tr_b16 {vr(E,2)}, v{t0}")
    a(f"ds_read_b64_tr_b16 {vr(E+2,2)}, v{t0} offset:5120")
    a(f"ds_read_b64_tr_b16 {vr(E+4,2)}, v{t0} offset:512")
    a(f"ds_read_b64_tr_b16 {vr(E+6,2)}, v{t0} offset:{512+5120}")
    a(f"ds_read_b64_tr_b16 {vr(E+8,2)}, v{t1}")
    a(f"ds_read_b64_tr_b16 {vr(E+10,2)}, v{t1} offset:5120")
    a(f"v_add_u32 v{E+14}, {LDS_S8}, v{t3}")
    a(f"ds_read_b64 {vr(E+12,2)}, v{E+14}")
    if touch == 3: tch(1)
    dma(2)
    a(f"s_lshl_b32 s{sT2}, s{sG8}, 7")
    a(f"s_add_u32 s{sT2}, s{sT2}, {WS_ST2}")
    a(f"s_cmp_eq_u32 s{sW}, 0")
    a(f"s_cselect_b32 s{sT2}, s{sT2}, {WS_SIZE}")
    vm.wait(1)
    a("s_waitcnt lgkmcnt(0)")
    a("s_barrier")
    a("s_mov_b64 exec, 0xff")
    a(f"buffer_store_dwordx2 {vr(E+12,2)}, v{t3}, {sr(WS,4)}, s{sT2} offen sc1")
    a("s_mov_b64 exec, -1")
    vm.issue("st", 1)
    for s in range(2, 9):
        dma(s+1)
        if s == 2:
            a(f"buffer_store_dwordx4 {vr(E,4)}, v{t2}, {sr(WS,4)}, s{sH0} offen {stf}")
            a(f"buffer_store_dwordx4 {vr(E+4,4)}, v{t2}, {sr(WS,4)}, s{sH1} offen {stf}")
            a(f"buffer_store_dwordx4 {vr(E+8,4)}, v{t2}, {sr(WS,4)}, s{sH2} offen {stf}")
            a(f"buffer_load_dwordx2 {vr(E+18,2)}, v{E+17}, {sr(DBG,4)}, 0 offen sc1")
            vm.issue("h", 4)
        if s == spos:
            a(f"v_lshlrev_b32 v{E+4}, 7, v{vL}")
            a(f"v_and_b32 v{E+5}, {15 << 7}, v{E+4}")
            a(f"v_and_b32 v{E+4}, {3 << 7}, v{E+4}")
            a(f"s_lshl_b32 s{sH0}, s{sMT}, 11")
            a(f"s_add_u32 s{sH0}, s{sH0}, {WS_SFL}")
            a(f"s_lshl_b32 s{sH1}, s{sW}, 9")
            a(f"s_add_u32 s{sH1}, s{sH1}, {WS_MFL}")
            a(f"v_lshrrev_b32 v{t3}, 3, v{vI}")
            a(f"v_lshlrev_b32 v{t3}, 7, v{t3}")
            a(f"v_and_b32 v{t0}, 7, v{vI}")
            a(f"v_lshl_add_u32 v{t3}, v{t0}, 3, v{t3}")
            a("s_mov_b64 exec, 0xffff")
            a(f"buffer_load_dwordx2 {vr(E+20,2)}, v{E+5}, {sr(WS,4)}, s{sH0} offen sc1")
            a("s_mov_b64 exec, -1")
            vm.issue("p", 1)
        vm.wait(s)
        if s == 4:
            a(f"s_mov_b32 s{sCnt}, 0x40000")
            a.label(f"{name}_NL")
            a(f"v_readfirstlane_b32 s{NON}, v{E+18}")
            a(f"v_readfirstlane_b32 s{NON+1}, v{E+19}")
            a(f"s_sub_u32 s{sCnt}, s{sCnt}, 1")
            a(f"s_cbranch_scc1 {name}_NX")
            a(f"s_cmp_lg_u32 s{NON}, 0")
            a(f"s_cbranch_scc1 {name}_NX")
            a(f"buffer_load_dwordx2 {vr(E+18,2)}, v{E+17}, {sr(DBG,4)}, 0 offen sc1")
            a("s_waitcnt vmcnt(0)")
            a(f"s_branch {name}_NL")
            a.label(f"{name}_NX")
            a(f"ds_write_b64 v{E+15}, {vr(E+18,2)} offset:32")
        a("s_barrier")
        if s in (2, 4, 6, 8): st2(s//2)
        if s == 4:
            a(f"s_lshl_b32 s{sT0}, s{sG8}, {FS}")
            a(f"s_add_u32 s{sT0}, s{sT0}, {WS_SFL}")
            a(f"s_cmp_eq_u32 s{sW}, 0")
            a(f"s_cselect_b32 s{sT2}, s{sT0}, {WS_SIZE}")
            a("s_mov_b64 exec, 1")
            a(f"buffer_store_dwordx2 {vr(E+18,2)}, v{E+17}, {sr(WS,4)}, s{sT2} offen sc1")
            a("s_mov_b64 exec, -1")
            vm.issue("fl", 1)
    a("s_waitcnt vmcnt(0)")
    poll64(f"{name}_PS", E+20, E+5, sH0, 0xffff, 0, 2, sCnt, first=False)
    a(f"buffer_load_dwordx2 {vr(E+8,2)}, v{t3}, {sr(WS,4)}, s{sSTo} offen sc1")
    a(f"s_lshl_b32 s{sT0}, s{sMT}, 7")
    a(f"s_add_u32 s{sT0}, s{sT0}, {WS_MFL}")
    a(f"s_or_b32 s{sT1}, s{sNT}, s{sW}")
    a(f"s_cselect_b32 s{sT0}, {WS_SIZE}, s{sT0}")
    a("s_mov_b64 exec, 1")
    a(f"buffer_store_dwordx2 {vr(E+18,2)}, v{E+17}, {sr(WS,4)}, s{sT0} offen sc1")
    a("s_mov_b64 exec, -1")
    st2(5)
    a("s_barrier")
    st2(6)
    a(f"s_lshl_b32 s{sT0}, s{sW}, 8")
    a(f"s_add_u32 s{sT0}, s{sT0}, {LDS_ST}")
    a(f"v_lshl_add_u32 v{t0}, v{vI}, 2, s{sT0}")
    a("s_waitcnt vmcnt(1)")
    a(f"ds_write2_b32 v{t0}, v{E+8}, v{E+9} offset0:0 offset1:32")
    vPH, vPHo, sPH = E+22, E+4, 49
    a(f"s_mov_b32 s{sPH}, s{sH1}")
    if gearly:
        a(f"s_branch {name}_G")
    else:
        a("s_waitcnt lgkmcnt(0)")
        a("s_barrier")
        a(f"s_branch {name}_G")
    a.label(f"{name}_C")
    vS = vT + 4
    a(f"v_mul_u32_u24 v{vT+1}, 1280, v{vH}")
    a(f"v_lshl_add_u32 v{vT}, v{vI}, 3, v{vT+1}")
    a(f"s_lshl_b32 s{sT0}, s{sMT}, 7")
    a(f"s_lshl_b32 s{sT1}, s{sNT}, 3")
    a(f"s_add_u32 s{sT1}, s{sT1}, s{sT0}")
    a(f"s_lshl_b32 s{sT2}, s{sW}, 1")
    a(f"s_add_u32 s{sT1}, s{sT1}, s{sT2}")
    a(f"s_mul_i32 s{sT1}, s{sT1}, 1280")
    a("s_waitcnt lgkmcnt(0)")
    srd(a, X, 4, 2048*640*2)
    for i in range(5):
        a(f"buffer_load_dwordx2 {vr(vS+2*i,2)}, v{vT}, {sr(X,4)}, s{sT1} offen offset:{256*i}")
    srd(a, WS, 42, WS_SIZE)
    a(f"v_bfe_u32 v{t0}, v{vL}, 1, 3")
    a(f"v_xor_b32 v{t0}, v{t0}, v{vH}")
    a(f"v_lshlrev_b32 v{t1}, 7, v{vI}")
    a(f"v_add_u32 v{t1}, s{sMX}, v{t1}")
    for t in range(4):
        a(f"v_xor_b32 v{t2}, {2*t}, v{t0}")
        a(f"v_lshl_add_u32 v{vXR+t}, v{t2}, 4, v{t1}")
    a(f"v_bfe_u32 v{t0}, v{vL}, 2, 2")
    a(f"v_lshl_add_u32 v{t1}, v{vH}, 3, v{t0}")
    a(f"v_lshlrev_b32 v{t1}, 8, v{t1}")
    a(f"v_bfe_u32 v{t2}, v{vL}, 4, 1")
    a(f"v_lshl_add_u32 v{t1}, v{t2}, 5, v{t1}")
    a(f"v_and_b32 v{t2}, 3, v{vL}")
    a(f"v_lshl_add_u32 v{t1}, v{t2}, 3, v{t1}")
    for b in range(4):
        a(f"v_xor_b32 v{t2}, {b}, v{t0}")
        a(f"v_lshl_add_u32 v{vWR+b}, v{t2}, 6, v{t1}")
    a(f"v_xor_b32 v{t2}, s{sW}, v{t0}")
    a(f"v_lshl_add_u32 v{vWO}, v{t2}, 6, v{t1}")
    a(f"v_and_b32 v{t0}, 7, v{vL}")
    a(f"v_bfe_u32 v{t1}, v{vL}, 4, 1")
    a(f"v_cmp_eq_u32 vcc, v{t0}, v{t1}")
    a(f"v_mov_b32 v{t2}, 0x3f803f80")
    for i in range(4): a(f"v_mov_b32 v{vCS+i}, 0")
    a(f"v_cndmask_b32 v{vSEL}, 0, v{t2}, vcc")
    for i in range(1, 4): a(f"v_mov_b32 v{vSEL+i}, v{vSEL}")
    for b in range(4): a(f"v_mfma_f32_32x32x16_bf16 {vr(vACC+16*b,16)}, {vr(vCS,4)}, {vr(vCS,4)}, 0")
    a(f"s_mul_i32 s{sT0}, s{sW}, 2560")
    a(f"s_add_u32 s{sT0}, s{sT0}, {LDS_MISC}")
    a(f"v_add_u32 v{t0}, s{sT0}, v{vT}")
    a(f"s_lshl_b32 s{sT0}, s{sW}, 4")
    a(f"s_add_u32 s{sT0}, s{sT0}, {LDS_S8}")
    a(f"v_lshl_add_u32 v{t1}, v{vH}, 3, s{sT0}")
    a(f"s_mov_b32 s{sT3}, 0x3000")
    E = vT + 30
    a("s_waitcnt vmcnt(0)")
    for i in range(10):
        a(f"v_lshlrev_b32 v{E+2*i}, 16, v{vS+i}")
        a(f"v_and_b32 v{E+2*i+1}, 0xffff0000, v{vS+i}")
    a(f"v_pk_add_f32 {vr(s0,2)}, {vr(E,2)}, {vr(E+2,2)}")
    a(f"v_pk_add_f32 {vr(s1,2)}, {vr(E+4,2)}, {vr(E+6,2)}")
    for i in range(8, 20, 4):
        a(f"v_pk_add_f32 {vr(s0,2)}, {vr(s0,2)}, {vr(E+i,2)}")
        a(f"v_pk_add_f32 {vr(s1,2)}, {vr(s1,2)}, {vr(E+i+2,2)}")
    a(f"v_pk_add_f32 {vr(s0,2)}, {vr(s0,2)}, {vr(s1,2)}")
    a(f"v_add_f32 v{s0}, v{s0}, v{s0+1}")
    allreduce32(a, s0, s1)
    a(f"v_mul_f32 v{s0}, {hexf(1/640)}, v{s0}")
    a(f"v_mov_b32 v{s0+1}, v{s0}")
    for i in range(0, 20, 2):
        a(f"v_pk_add_f32 {vr(E+i,2)}, {vr(E+i,2)}, {vr(s0,2)} neg_lo:[0,1] neg_hi:[0,1]")
    a(f"v_pk_mul_f32 {vr(s1,2)}, {vr(E,2)}, {vr(E,2)}")
    a(f"v_pk_mul_f32 {vr(s2_,2)}, {vr(E+2,2)}, {vr(E+2,2)}")
    for i in range(4, 20, 4):
        a(f"v_pk_fma_f32 {vr(s1,2)}, {vr(E+i,2)}, {vr(E+i,2)}, {vr(s1,2)}")
        a(f"v_pk_fma_f32 {vr(s2_,2)}, {vr(E+i+2,2)}, {vr(E+i+2,2)}, {vr(s2_,2)}")
    a(f"v_pk_add_f32 {vr(s1,2)}, {vr(s1,2)}, {vr(s2_,2)}")
    a(f"v_add_f32 v{s1}, v{s1}, v{s1+1}")
    allreduce32(a, s1, s2_)
    mB, rB, var, dm = vT+56, vT+57, vT+58, vT+59
    a(f"v_mul_f32 v{var}, {hexf(1/640)}, v{s1}")
    a(f"v_cvt_pk_bf16_f32 v{rB}, v{s0}, v{var}")
    a(f"v_lshlrev_b32 v{mB}, 16, v{rB}")
    a(f"v_and_b32 v{rB}, 0xffff0000, v{rB}")
    a(f"v_add_f32 v{rB}, {hexf(1e-5)}, v{rB}")
    bf16r(a, rB)
    a(f"v_sqrt_f32 v{rB}, v{rB}")
    a(f"v_sub_f32 v{dm}, v{s0}, v{mB}")
    bf16r(a, rB)
    a(f"v_rcp_f32 v{rB}, v{rB}")
    a.nop(1)
    a(f"v_mul_f32 v{dm}, v{dm}, v{rB}")
    a(f"v_mul_f32 v{var}, v{var}, v{rB}")
    a(f"v_mul_f32 v{var}, v{var}, v{rB}")
    a(f"v_cvt_pk_bf16_f32 v{s1}, v{dm}, v{var}")
    a(f"v_lshlrev_b32 v{s0}, 16, v{s1}")
    a(f"v_and_b32 v{s1}, 0xffff0000, v{s1}")
    a(f"v_add_f32 v{s1}, {hexf(1e-5)}, v{s1}")
    bf16r(a, s1)
    a(f"v_sqrt_f32 v{s1}, v{s1}")
    a(f"v_sub_f32 v{dm}, v{dm}, v{s0}")
    bf16r(a, s1)
    a(f"v_rcp_f32 v{s1}, v{s1}")
    a(f"ds_write_b64 v{t1}, {vr(mB,2)}")
    a(f"v_mul_f32 v{s0}, v{dm}, v{s1}")
    a(f"v_mul_f32 v{s1}, v{s1}, v{rB}")
    a(f"v_mov_b32 v{s0+1}, v{s0}")
    a(f"v_mov_b32 v{s1+1}, v{s1}")
    for i in range(0, 20, 2):
        a(f"v_pk_fma_f32 {vr(E+i,2)}, {vr(E+i,2)}, {vr(s1,2)}, {vr(s0,2)}")
    for i in range(10):
        a(f"v_cvt_pk_bf16_f32 v{vS+i}, v{E+2*i}, v{E+2*i+1}")
    for i in range(5):
        a(f"ds_write_b64 v{t0}, {vr(vS+2*i,2)} offset:{256*i}")
    a("s_waitcnt lgkmcnt(0)")
    a(f"s_cmp_ge_u32 s{sNT}, 11")
    a(f"s_cbranch_scc1 {name}_V")

    def reads(t, fs):
        F = vF + 24*fs
        L = [f"ds_read_b128 {vr(F,4)}, v{vXR+t}"]
        for b in range(4):
            for h in range(2):
                L.append(f"ds_read_b64_tr_b16 {vr(F+4+4*b+2*h,2)}, v{vWR+b} offset:{t*4096+h*1024}")
        for h in range(2):
            L.append(f"ds_read_b64_tr_b16 {vr(F+20+2*h,2)}, v{vWO} offset:{t*4096+h*1024}")
        return L
    def advance():
        L = []
        for t in range(4):
            L.append(f"v_add_u32 v{t0}, 0x1000, v{vXR+t}\nv_bfi_b32 v{vXR+t}, s{sT3}, v{t0}, v{vXR+t}")
        for r in list(range(vWR, vWR+4)) + [vWO]:
            L.append(f"v_add_u32 v{r}, 0x4000, v{r}\nv_and_b32 v{r}, 0xffff, v{r}")
        return L
    def mfmas(fs, isV):
        F = vF + 24*fs
        L = []
        for b in range(4):
            A, B = (vr(F,4), vr(F+4+4*b,4)) if isV else (vr(F+4+4*b,4), vr(F,4))
            L.append(f"v_mfma_f32_32x32x16_bf16 {vr(vACC+16*b,16)}, {A}, {B}, {vr(vACC+16*b,16)}")
        sm = f"v_mfma_f32_16x16x32_bf16 {vr(vCS,4)}, {vr(vSEL,4)}, {vr(F+20,4)}, {vr(vCS,4)}"
        return [sm] + L if sfirst else L + [sm]
    def interleave(ms, others, per):
        idx = 0
        for i, m in enumerate(ms):
            a(m)
            for _ in range(per[i]):
                if idx < len(others): a(others[idx]); idx += 1
        assert idx == len(others)
    def mainloop(isV):
        lab = f"{name}_L{'V' if isV else 'Q'}"
        a("s_barrier")
        for x in reads(0, 0): a(x)
        a(f"s_mov_b32 s{sCnt}, 9")
        a(".p2align 3")
        a.label(lab)
        P0 = (2, 4, 4, 1, 0); P2 = (2, 4, 4, 5, 5); lv = 0
        for t in range(4):
            fs = t % 2
            a("s_waitcnt lgkmcnt(0)")
            if t < 3:
                oth = reads(t+1, 1-fs)
                if t == 2: interleave(mfmas(fs, isV), oth + advance(), P2)
                else: interleave(mfmas(fs, isV), oth, P0)
            elif lv == 0:
                a(f"s_cmp_eq_u32 s{sCnt}, 0")
                a(f"s_cbranch_scc1 {lab}_x")
                a("s_barrier")
                a(f"s_sub_u32 s{sCnt}, s{sCnt}, 1")
                interleave(mfmas(fs, isV), reads(0, 1-fs), P0)
                a(f"s_branch {lab}")
            else:
                ms = mfmas(fs, isV)
                for m in ms[:lv]: a(m)
                a(f"s_cmp_eq_u32 s{sCnt}, 0")
                a(f"s_cbranch_scc1 {lab}_x")
                a("s_barrier")
                a(f"s_sub_u32 s{sCnt}, s{sCnt}, 1")
                rd = reads(0, 1-fs)
                for x in rd[:4]: a(x)
                interleave(ms[lv:], rd[4:], (4, 3, 0, 0, 0))
                a(f"s_branch {lab}")
        a.label(f"{lab}_x")
        for m in mfmas(1, isV): a(m)
    def cswrite():
        a(f"s_lshl_b32 s{sT0}, s{sW}, 7")
        a(f"s_add_u32 s{sT0}, s{sT0}, {LDS_CS}")
        a(f"v_lshl_add_u32 v{t0}, v{vL}, 2, s{sT0}")
    def cswrite2():
        a("s_mov_b64 exec, 0xffff")
        a(f"ds_write2_b32 v{t0}, v{vCS}, v{vCS+1} offset0:0 offset1:16")
        a("s_mov_b64 exec, -1")
        a("s_waitcnt vmcnt(0) lgkmcnt(0)")
        if cprio: a("s_setprio 3")
        a("s_barrier")
        a.rstamp(5)
        a(f"v_mov_b32 v{vT+60}, {LDS_CNT}")
        a(f"ds_read_b64 {vr(vT+62,2)}, v{vT+60} offset:32")
    mainloop(False)
    cswrite()
    def csreg(rho): return (vF + 4*rho) if rho < 12 else (vSQ + 4*(rho-12))
    vA16, vBq, vBk, vNk = vT, vT+1, vT+2, vT+4
    a(f"v_lshlrev_b32 v{vA16}, 4, v{vL}")
    a(f"v_lshlrev_b32 v{t1}, 3, v{vI}")
    a(f"v_lshl_add_u32 v{vBq}, v{vH}, 15, v{t1}")
    a(f"v_mul_u32_u24 v{t2}, {64*KVT}, v{vH}")
    a(f"v_add_u32 v{vBk}, v{t2}, v{t1}")
    a(f"v_lshlrev_b32 v{vNk}, 2, v{vH}")
    a(f"v_add_u32 v{vNk}, {LDS_CNT}, v{vNk}")
    a(f"s_lshl_b32 s{sT0}, s{sW}, 8")
    a(f"s_add_u32 s{sT0}, s{sT0}, {LDS_ST}")
    a(f"v_lshl_add_u32 v{t1}, v{vI}, 2, s{sT0}")
    a(f"v_lshlrev_b32 v{t2}, 4, v{vH}")
    a(f"v_add_u32 v{t2}, {LDS_CS}, v{t2}")
    cswrite2()
    m, r = vT+50, vT+51
    a(f"ds_read2_b32 {vr(m,2)}, v{t1} offset0:0 offset1:32")
    for rho in range(15):
        a(f"ds_read_b128 {vr(csreg(rho),4)}, v{t2} offset:{rho*32}")
    sG, sQT = 33, 34
    a(f"s_mul_i32 s{sG}, s{sNT}, 6")
    a(f"s_lshl_b32 s{sQT}, s{sMT}, 2")
    a(f"s_add_u32 s{sQT}, s{sQT}, s{sW}")
    rq = vT + 5
    mm = vT + 6
    a("s_waitcnt lgkmcnt(15)")
    a(f"v_mul_f32 v{rq}, {hexf(QSCALE)}, v{r}")
    a(f"v_mov_b32 v{mm}, v{m}")
    a(f"v_mov_b32 v{mm+1}, v{m}")
    rr = vT + 8
    P = vT + 12
    n0, n1, n2 = vT+24+2, vT+24+4, vT+24+6
    for p in range(3):
        r0 = 5*p
        end = f"{name}_p{p}e"
        a(f"s_add_u32 s{sT0}, s{sG}, {2*p}")
        if p == 2:
            a(f"s_cmp_ge_u32 s{sT0}, 64")
            a(f"s_cbranch_scc1 {end}")
        a(f"s_waitcnt lgkmcnt({10-5*p})")
        for rho in range(r0, r0+5):
            for hh in range(2):
                A = vACC + 4*rho + 2*hh
                a(f"v_pk_fma_f32 {vr(A,2)}, {vr(mm,2)}, {vr(csreg(rho)+2*hh,2)}, {vr(A,2)} neg_lo:[1,0,0] neg_hi:[1,0,0]")
        def ss(dst, rhos):
            first = True
            for rho in rhos:
                for hh in range(2):
                    A = vACC + 4*rho + 2*hh
                    if first: a(f"v_pk_mul_f32 {vr(dst,2)}, {vr(A,2)}, {vr(A,2)}"); first = False
                    else: a(f"v_pk_fma_f32 {vr(dst,2)}, {vr(A,2)}, {vr(A,2)}, {vr(dst,2)}")
        ss(n0, (r0, r0+1)); ss(n1, (r0+3, r0+4)); ss(n2, (r0+2,))
        a(f"v_add_f32 v{n0}, v{n0}, v{n0+1}")
        a(f"v_add_f32 v{n1}, v{n1}, v{n1+1}")
        a(f"v_add_f32 v{n2}, v{n2}, v{n2+1}")
        a(f"s_cmp_lt_u32 s{sT0}, 32")
        a(f"s_cselect_b64 vcc, -1, 0")
        a(f"v_permlane32_swap_b32 v{n0}, v{n1}")
        a(f"v_cndmask_b32 v{rr}, v{r}, v{rq}, vcc")
        a(f"v_cndmask_b32 v{rr+1}, v{r}, v{rq}, vcc")
        a(f"v_add_f32 v{n0}, v{n0}, v{n1}")
        a(f"v_add_f32 v{n0}, v{n0}, v{n2}")
        a(f"v_sqrt_f32 v{n0}, v{n0}")
        for k in range(10):
            A = vACC + 4*r0 + 2*k
            a(f"v_pk_mul_f32 {vr(A,2)}, {vr(A,2)}, {vr(rr,2)}")
        a(f"v_mul_f32 v{n0}, v{n0}, v{rr}")
        for k in range(4): a(f"v_cvt_pk_bf16_f32 v{P+k}, v{vACC+4*r0+2*k}, v{vACC+4*r0+2*k+1}")
        for k in range(4): a(f"v_cvt_pk_bf16_f32 v{P+4+k}, v{vACC+4*(r0+3)+2*k}, v{vACC+4*(r0+3)+2*k+1}")
        for k in range(2): a(f"v_cvt_pk_bf16_f32 v{P+8+k}, v{vACC+4*(r0+2)+2*k}, v{vACC+4*(r0+2)+2*k+1}")
        a(f"s_cbranch_scc0 {name}_p{p}k")
        a(f"s_lshl_b32 s{sT1}, s{sT0}, 6")
        a(f"s_add_u32 s{sT1}, s{sT1}, s{sQT}")
        a(f"s_lshl_b32 s{sT2}, s{sT1}, 10")
        a(f"s_add_u32 s{sT2}, s{sT2}, {WS_QA}")
        a(f"s_add_u32 s{sT3}, s{sT2}, 65536")
        a(f"v_mul_f32 v{n1}, {hexf(-(1+2**-7))}, v{n0}")
        a(f"v_mov_b32 v{n1+1}, 0")
        a(f"buffer_store_dwordx4 {vr(P,4)}, v{vA16}, {sr(WS,4)}, s{sT2} offen {stf}")
        a(f"buffer_store_dwordx4 {vr(P+4,4)}, v{vA16}, {sr(WS,4)}, s{sT3} offen {stf}")
        a(f"v_cvt_pk_bf16_f32 v{n1}, v{n1}, v{n1+1}")
        a(f"s_lshl_b32 s{sT2}, s{sT1}, 9")
        a(f"s_add_u32 s{sT2}, s{sT2}, {WS_QB}")
        a(f"buffer_store_dwordx2 {vr(P+8,2)}, v{vBq}, {sr(WS,4)}, s{sT2} offen {stf}")
        a(f"buffer_store_dwordx2 {vr(n1,2)}, v{vBq}, {sr(WS,4)}, s{sT2} offen offset:256 {stf}")
        a(f"s_branch {name}_p{p}m")
        a.label(f"{name}_p{p}k")
        a(f"s_lshl_b32 s{sT1}, s{sT0}, 6")
        a(f"s_add_u32 s{sT1}, s{sT1}, s{sQT}")
        a(f"s_mul_i32 s{sT2}, s{sT1}, {KVT}")
        a(f"s_add_u32 s{sT2}, s{sT2}, {(WS_KV - 32*64*KVT) & 0xffffffff}")
        a(f"s_add_u32 s{sT3}, s{sT2}, {64*KVT}")
        a(f"buffer_store_dwordx4 {vr(P,4)}, v{vA16}, {sr(WS,4)}, s{sT2} offen {stf}")
        a(f"buffer_store_dwordx4 {vr(P+4,4)}, v{vA16}, {sr(WS,4)}, s{sT3} offen {stf}")
        a(f"buffer_store_dwordx2 {vr(P+8,2)}, v{vBk}, {sr(WS,4)}, s{sT2} offen offset:1024 {stf}")
        a.label(f"{name}_p{p}m")
        for ror in (8, 4, 2, 1):
            a.nop(2)
            a(f"v_max_u32_dpp v{n0}, v{n0}, v{n0} row_ror:{ror} row_mask:0xf bank_mask:0xf")
        a("s_mov_b32 exec_lo, 0x10001")
        a("s_mov_b32 exec_hi, 0x10001")
        a(f"ds_max_u32 v{vNk}, v{n0} offset:{56+8*p}")
        a("s_mov_b64 exec, -1")
        a.label(end)
    a(f"s_branch {name}_A")
    a.label(f"{name}_V")
    mainloop(True)
    cswrite()
    vV = vT
    a(f"s_sub_u32 s{sT0}, s{sNT}, 11")
    a(f"s_lshl_b32 s{sT0}, s{sT0}, 7")
    a(f"s_mov_b32 s{sT1}, {64*KVT}")
    a(f"v_mul_u32_u24 v{t3}, 320, v{vH}")
    for b in range(4):
        a(f"v_add_u32 v{vV+b}, s{sT0}, v{vI}")
        if b: a(f"v_add_u32 v{vV+b}, {32*b}, v{vV+b}")
        a(f"v_mul_u32_u24 v{t1}, 3277, v{vV+b}")
        a(f"v_lshrrev_b32 v{t1}, 16, v{t1}")
        a(f"v_mul_u32_u24 v{t2}, 20, v{t1}")
        a(f"v_sub_u32 v{vV+b}, v{vV+b}, v{t2}")
        a(f"v_mul_lo_u32 v{t1}, v{t1}, s{sT1}")
        a(f"v_lshl_add_u32 v{vV+b}, v{vV+b}, 4, v{t3}")
        a(f"v_add_u32 v{vV+b}, v{vV+b}, v{t1}")
    a(f"s_lshl_b32 s{sT0}, s{sW}, 8")
    a(f"s_add_u32 s{sT0}, s{sT0}, {LDS_ST}")
    a(f"v_lshl_add_u32 v{t1}, v{vH}, 4, s{sT0}")
    a(f"v_lshlrev_b32 v{t2}, 2, v{vI}")
    a(f"v_add_u32 v{t2}, {LDS_CS}, v{t2}")
    cswrite2()
    M, RR, CSv = vF, vF+16, vF+32
    for b in range(4):
        a(f"ds_read_b32 v{CSv+2*b}, v{t2} offset:{128*b}")
    for i in range(4):
        a(f"ds_read_b128 {vr(M+4*i,4)}, v{t1} offset:{32*i}")
        a(f"ds_read_b128 {vr(RR+4*i,4)}, v{t1} offset:{128+32*i}")
    a(f"s_lshl_b32 s{sT0}, s{sMT}, 2")
    a(f"s_add_u32 s{sT0}, s{sT0}, s{sW}")
    a(f"s_mul_i32 s{sT0}, s{sT0}, {KVT}")
    a(f"s_add_u32 s{sT0}, s{sT0}, {WS_KV+1280}")
    a("s_waitcnt lgkmcnt(8)")
    P = vT + 8
    for b in range(4):
        a(f"v_mov_b32 v{CSv+2*b+1}, v{CSv+2*b}")
    a("s_waitcnt lgkmcnt(0)")
    for b in range(4):
        for k in range(8):
            A = vACC + 16*b + 2*k
            a(f"v_pk_fma_f32 {vr(A,2)}, {vr(M+2*k,2)}, {vr(CSv+2*b,2)}, {vr(A,2)} neg_lo:[1,0,0] neg_hi:[1,0,0]")
        for k in range(8):
            A = vACC + 16*b + 2*k
            a(f"v_pk_mul_f32 {vr(A,2)}, {vr(A,2)}, {vr(RR+2*k,2)}")
        PP = P + 8*(b % 2)
        for k in range(8):
            a(f"v_cvt_pk_bf16_f32 v{PP+k}, v{vACC+16*b+2*k}, v{vACC+16*b+2*k+1}")
        a(f"buffer_store_dwordx4 {vr(PP,4)}, v{vV+b}, {sr(WS,4)}, s{sT0} offen {stf}")
        a(f"buffer_store_dwordx4 {vr(PP+4,4)}, v{vV+b}, {sr(WS,4)}, s{sT0} offen offset:640 {stf}")
    LDS_MX = LDS_AX + 15360
    sW, sWV = 3, 37
    WS, W1, B1, W2, B2, X = 20, 12, 16, 60, 64, 68
    sT0, sT1, sT2, sT3 = 28, 29, 30, 31
    sXC, sJ = 10, 11
    vL, vI, vH, vCNT = 1, 2, 3, 4
    a.label(f"{name}_A")
    a.rstamp(6)
    sQF = 65
    a("s_waitcnt lgkmcnt(0)")
    a(f"v_readfirstlane_b32 s{NON}, v{vT+62}")
    a(f"v_readfirstlane_b32 s{NON+1}, v{vT+63}")
    a(f"s_lshl_b32 s{sQF}, s{sNT}, 4")
    a(f"s_add_u32 s{sQF}, s{sQF}, s{sMT}")
    a(f"s_lshl_b32 s{sQF}, s{sQF}, {FS}")
    a(f"s_add_u32 s{sQF}, s{sQF}, {WS_QFL}")
    def common():
        a(f"s_and_b32 s{sXC}, s2, 7")
        a(f"s_lshr_b32 s{sJ}, s2, 3")
        a(f"v_and_b32 v{vI}, 31, v{vL}")
        a(f"v_lshrrev_b32 v{vH}, 5, v{vL}")
        a(f"v_mov_b32 v{vCNT}, {LDS_CNT}")
    common()
    sHD, sQB, sKV, sKV0, sCnt, sQ = 32, 33, 34, 35, 36, 38
    sE_V, sE_LO, sE_HI = 40, 42, 44
    vKA, vKB, vV, t0, t1, t2, t3 = 5, 6, 7, 8, 9, 10, 11
    KVS = lambda s: 12 + 14*s
    P = 40; S = lambda i: 48 + 16*(i % 2); Q = lambda j: 80 + 6*j; O = lambda j: 128 + 16*j
    a(f"s_and_b32 s{sHD}, s{sJ}, 3")
    a(f"s_lshl_b32 s{sT0}, s{sXC}, 2")
    a(f"s_add_u32 s{sHD}, s{sHD}, s{sT0}")
    a(f"s_lshr_b32 s{sQB}, s{sJ}, 2")
    a(f"s_mov_b32 s{sE_V}, 0xfffff")
    a(f"s_mov_b32 s{sE_V+1}, 0xfffff")
    a(f"s_mov_b32 s{sE_LO}, -1")
    a(f"s_mov_b32 s{sE_LO+1}, 0")
    a(f"s_mov_b32 s{sE_HI}, 0")
    a(f"s_mov_b32 s{sE_HI+1}, -1")
    a(f"v_lshlrev_b32 v{vKA}, 4, v{vL}")
    a(f"v_lshlrev_b32 v{vKB}, 3, v{vL}")
    a(f"v_mul_u32_u24 v{t0}, 20, v{vH}")
    a(f"v_add_u32 v{t0}, v{t0}, v{vI}")
    a(f"v_lshlrev_b32 v{vV}, 4, v{t0}")
    a(f"s_lshl_b32 s{sT0}, s{sHD}, 6")
    a(f"s_lshl_b32 s{sT1}, s{sW}, 4")
    a(f"s_add_u32 s{sT1}, s{sT1}, s{sT0}")
    a(f"s_mul_i32 s{sKV0}, s{sT1}, {KVT}")
    a(f"s_add_u32 s{sKV0}, s{sKV0}, {WS_KV}")
    a(f"s_lshl_b32 s{sT1}, s{sQB}, 3")
    a(f"s_add_u32 s{sQ}, s{sT0}, s{sT1}")
    a(f"s_lshl_b32 s{sT3}, s{sW}, 1")
    a(f"v_cmp_eq_u32 vcc, 20, v{vI}")
    a(f"v_mov_b32 v{t0}, 0x3f803f80")
    a.nop(1)
    a(f"v_cndmask_b32 v{t1}, 0, v{t0}, vcc")
    for s in range(2):
        for k in range(4, 12): a(f"v_mov_b32 v{KVS(s)+k}, v{t1}")
        a(f"v_mov_b32 v{KVS(s)+13}, 0")
    for k in range(8): a(f"v_mov_b32 v{P+k}, 0")
    sRB, sSL, sSD = 39, 46, 47
    a(f"s_mov_b32 s{sKV}, s{sKV0}")
    a(f"s_mul_i32 s{sRB}, s{sW}, 18432")
    a(f"s_mov_b32 s{sSL}, s{sRB}")
    a(f"s_mov_b32 s{sSD}, s{sRB}")
    sRE = 64
    a(f"s_add_u32 s{sRE}, s{sRB}, 15360")
    def zeroO():
        for j in range(8): a(f"v_mfma_f32_32x32x16_bf16 {vr(O(j),16)}, {vr(P,4)}, {vr(P,4)}, 0")
    zeroO()
    FV, FD = S(0)+9, S(0)+12
    a(f"s_add_u32 s66, s{sHD}, 32")
    a(f"s_mul_i32 s67, s66, 43")
    a(f"s_lshr_b32 s67, s67, 8")
    a(f"s_mul_i32 s68, s67, {16*8 - 6}")
    a(f"s_add_u32 s67, s68, s66")
    a(f"s_mul_i32 s68, s{sHD}, 20")
    a(f"s_add_u32 s69, s68, 19")
    a(f"s_lshr_b32 s68, s68, 7")
    a(f"s_lshr_b32 s69, s69, 7")
    a(f"s_lshl_b32 s68, s68, 7")
    a(f"s_lshl_b32 s69, s69, 7")
    a(f"s_add_u32 s68, s68, {11*128 - 32}")
    a(f"s_add_u32 s69, s69, {11*128 - 64}")
    a(f"s_lshl_b32 s70, s{sW}, 5")
    for r in (67, 68, 69): a(f"s_add_u32 s{r}, s{r}, s70")
    a(f"s_mul_i32 s70, s{sHD}, 43")
    a(f"s_lshr_b32 s70, s70, 8")
    a(f"s_mul_i32 s70, s70, {16*8 - 6}")
    a(f"s_add_u32 s70, s70, s{sHD}")
    a(f"s_lshl_b32 s71, s{sQB}, 1")
    a(f"s_lshr_b32 s66, s{sW}, 1")
    a(f"s_add_u32 s71, s71, s66")
    a(f"s_lshl_b32 s71, s71, 3")
    a(f"s_add_u32 s70, s70, s71")
    a(f"s_sub_u32 s70, s70, 96")
    a(f"v_mov_b32 v{FV}, s70")
    a("s_mov_b64 exec, 0xfff")
    a(f"v_mov_b32 v{FV}, s69")
    a("s_mov_b64 exec, 0xff")
    a(f"v_mov_b32 v{FV}, s68")
    a("s_mov_b64 exec, 0xf")
    a(f"v_mov_b32 v{FV}, s67")
    a("s_mov_b64 exec, -1")
    a(f"v_lshl_add_u32 v{FV}, v{vL}, 3, v{FV}")
    a(f"v_lshlrev_b32 v{FV}, 4, v{FV}")
    a(f"s_mov_b32 s67, {WS_QFL}")
    a(f"v_lshl_add_u32 v{FD+4}, v{vL}, 2, v{vCNT}")
    a(f"v_mov_b32 v{FD}, s{NON}")
    a(f"v_mov_b32 v{FD+1}, s{NON+1}")
    a(f"v_mov_b32 v{FD+3}, 0")
    a("s_waitcnt vmcnt(0)")
    a.rstamp(7)
    last_arriver(vCNT, FD+2, sT0, 48, f"{name}_QR")
    a("s_mov_b64 exec, 0x3f")
    a(f"ds_read_b32 v{FD+2}, v{FD+4} offset:56")
    a("s_waitcnt lgkmcnt(0)")
    a(f"buffer_store_dwordx4 {vr(FD,4)}, v{vKA}, {sr(WS,4)}, s{sQF} offen sc1")
    a("s_mov_b64 exec, -1")
    a.label(f"{name}_QR")
    a(f"s_mov_b32 s{sCnt}, 0x40000")
    a("s_mov_b64 exec, 0x1fff")
    if slp0: a(f"s_sleep {slp0}")
    a.label(f"{name}_PVL")
    a(f"buffer_load_dwordx3 {vr(FD+4,3)}, v{FV}, {sr(WS,4)}, s67 offen sc1")
    a("s_waitcnt vmcnt(0)")
    a(f"v_cmp_ne_u64 vcc, {sr(NON,2)}, {vr(FD+4,2)}")
    a(f"s_sub_u32 s{sCnt}, s{sCnt}, 1")
    a(f"s_cbranch_scc1 {name}_PVX")
    a.nop(3)
    a(f"s_cbranch_vccz {name}_PVX")
    a(f"s_sleep {slpq}")
    a(f"s_branch {name}_PVL")
    a.label(f"{name}_PVX")
    a("s_mov_b64 exec, 0xf")
    a(f"ds_max_u32 v{vCNT}, v{FD+6} offset:40")
    a("s_mov_b64 exec, 0x1000")
    a(f"ds_max_u32 v{vCNT}, v{FD+6} offset:44")
    a("s_mov_b64 exec, -1")
    if ghold == 1: lds_arrive(a, vCNT, FD, 28)
    def kvdma():
        L = []
        for k in range(5):
            L.append(f"s_add_u32 m0, s{sSD}, {(k//4)*4096}" if k % 4 == 0 else None)
            if k == 4: L.append(f"s_add_u32 s{sKV}, s{sKV}, 4096")
            elif k == 0: L.append("s_nop 0")
            L.append(f"buffer_load_dwordx4 v{vKA}, {sr(WS,4)}, s{sKV} offen offset:{(k%4)*1024} {ldf} lds")
        L += [f"s_add_u32 s{sKV}, s{sKV}, 1024",
              f"s_add_u32 s{sSD}, s{sSD}, 5120"]
        return [x for x in L if x]
    a(f"s_add_u32 s{sT0}, s{sQ}, s{sT3}")
    a(f"s_lshl_b32 s{sT1}, s{sT0}, 10")
    a(f"s_add_u32 s{sT1}, s{sT1}, {WS_QA}")
    a(f"s_mov_b32 m0, s{sRE}")
    a(f"s_lshl_b32 s{sT0}, s{sT0}, 9")
    a(f"buffer_load_dwordx4 v{vKA}, {sr(WS,4)}, s{sT1} offen {ldf} lds")
    a(f"buffer_load_dwordx4 v{vKA}, {sr(WS,4)}, s{sT1} offen offset:1024 {ldf} lds")
    a(f"s_add_u32 s{sT0}, s{sT0}, {WS_QB - 2048}")
    a(f"buffer_load_dwordx4 v{vKA}, {sr(WS,4)}, s{sT0} offen offset:2048 {ldf} lds")
    for x in kvdma(): a(x)
    for x in kvdma(): a(x)
    def kvaddr():
        return [f"v_add_u32 v{t0}, s{sSL}, v{vKA}", f"v_add_u32 v{t1}, s{sSL}, v{vKB}", f"v_add_u32 v{t2}, s{sSL}, v{vV}"]
    def kvread(s, o):
        K = KVS(s)
        return [f"ds_read_b128 {vr(K,4)}, v{t0} offset:{o}",
                f"s_mov_b64 exec, {sr(sE_LO,2)}",
                f"ds_read_b64 {vr(K+12,2)}, v{t1} offset:{o+1024}",
                f"s_mov_b64 exec, {sr(sE_V,2)}",
                f"ds_read_b128 {vr(K+4,4)}, v{t2} offset:{o+1280}",
                f"ds_read_b128 {vr(K+8,4)}, v{t2} offset:{o+1920}",
                f"s_mov_b64 exec, -1"]
    for x in kvaddr(): a(x)
    QAd = S(0)
    for p in range(4):
        a(f"s_xor_b32 s{sT0}, s{sW}, {p}")
        a(f"s_mul_i32 s{sT0}, s{sT0}, 18432")
        a(f"s_add_u32 s{sT0}, s{sT0}, 15360")
        a(f"v_add_u32 v{QAd+2*p}, s{sT0}, v{vKA}")
        a(f"v_add_u32 v{QAd+2*p+1}, s{sT0}, v{vKB}")
    qm = S(1)
    a("s_waitcnt vmcnt(10)")
    lds_sync(a, vCNT, t3, sT0, 24, 4, f"{name}_s6")
    if ghold == 2: lds_arrive(a, vCNT, t3, 28)
    a(f"ds_read_b64 {vr(qm,2)}, v{vCNT} offset:40")
    a.stamp(2)
    for j in range(8):
        a(f"ds_read_b128 {vr(Q(j),4)}, v{QAd+2*(3^(j>>1))} offset:{(j&1)*1024}")
        a(f"ds_read_b64 {vr(Q(j)+4,2)}, v{QAd+2*(3^(j>>1))+1} offset:{2048+(j&1)*512}")
    a("s_waitcnt lgkmcnt(15)")
    a(f"v_mul_f32 v{qm}, {hexf(1+2**-7)}, v{qm}")
    a(f"v_mov_b32 v{qm+2}, {hexf(THRESH/(1+2**-6))}")
    a(f"v_mul_f32 v{qm+1}, v{qm+1}, v{qm}")
    a(f"v_cvt_pk_bf16_f32 v{qm}, v{qm}, v{KVS(0)+13}")
    a(f"v_cmp_nle_f32 vcc, v{qm+1}, v{qm+2}")
    a(f"v_mov_b32 v{KVS(0)+12}, v{qm}")
    a(f"v_mov_b32 v{KVS(1)+12}, v{qm}")
    a("s_waitcnt vmcnt(5)")
    a(f"s_cbranch_vccnz {name}_FB")
    a.label(f"{name}_M")
    def QK(n, s):
        j = n % 8; K = KVS(s)
        return (f"v_mfma_f32_32x32x16_bf16 {vr(S(n),16)}, {vr(K,4)}, {vr(Q(j),4)}, 0",
                f"v_mfma_f32_32x32x8_bf16 {vr(S(n),16)}, {vr(K+12,2)}, {vr(Q(j)+4,2)}, {vr(S(n),16)}")
    def PV(j, s, m):
        return f"v_mfma_f32_32x32x16_bf16 {vr(O(j),16)}, {vr(KVS(s)+4+4*m,4)}, {vr(P+4*m,4)}, {vr(O(j),16)}"
    for x in kvread(0, 0): a(x)
    a("s_waitcnt lgkmcnt(0)")
    for x in QK(0, 0): a(x)
    a(f"s_mov_b32 s{sCnt}, 8")
    if cprio: a("s_setprio 0")
    a.nop(10)
    a.stamp(3); a.rstamp(0)
    def rd(s, o):
        K = KVS(s)
        return [[f"ds_read_b128 {vr(K,4)}, v{t0} offset:{o}"],
                [f"s_mov_b64 exec, {sr(sE_LO,2)}", f"ds_read_b64 {vr(K+12,2)}, v{t1} offset:{o+1024}", "s_mov_b64 exec, -1"],
                [f"s_mov_b64 exec, {sr(sE_V,2)}", f"ds_read_b128 {vr(K+4,4)}, v{t2} offset:{o+1280}", f"ds_read_b128 {vr(K+8,4)}, v{t2} offset:{o+1920}", "s_mov_b64 exec, -1"]]
    def dm(k):
        L = [f"buffer_load_dwordx4 v{vKA}, {sr(WS,4)}, s{sKV} offen offset:{(k%4)*1024} {ldf} lds"]
        if k == 3: L += [f"s_add_u32 m0, s{sSD}, 4096", f"s_add_u32 s{sKV}, s{sKV}, 4096"]
        if k == 4: L += [f"s_add_u32 s{sKV}, s{sKV}, 1024"]
        return L
    def abody(lab, dma, last=False):
      if lab:
          a(".p2align 3")
          a.label(lab)
      for s in range(2):
        for j in range(8):
            sa = S(j)
            M1, M2 = QK(j+1, s if j < 7 else 1-s)
            M3 = PV((j-1) % 8, s if j > 0 else 1-s, 1)
            M4 = PV(j, s, 0)
            e = [f"v_exp_f32 v{sa+i}, v{sa+i}" for i in range(16)]
            c = [f"v_cvt_pk_bf16_f32 v{P+i}, v{sa+2*i}, v{sa+2*i+1}" for i in range(8)]
            pre = []; x1 = []; x3 = []; x4 = []
            if kv == "ring":
                if j == 7: pre = ["s_waitcnt lgkmcnt(0)"]
                r = rd(1-s, KVT if s == 0 else 0)
                if j < 3: x3 = r[j]
                if s == 0 and dma:
                    if j == 0: x4 = [f"s_mov_b32 m0, s{sSD}"]
                    if 1 <= j <= 5 and 'N' not in xp: x1 = dm(j-1)
                    if j == 6: x1 = [f"s_add_u32 s{sSD}, s{sSD}, 5120", f"s_cmp_eq_u32 s{sSD}, s{sRE}", f"s_cselect_b32 s{sSD}, s{sRB}, s{sSD}"]
                if s == 0 and j == 3: x3 = [f"s_add_u32 s{sSL}, s{sSL}, 5120", f"s_cmp_eq_u32 s{sSL}, s{sRE}", f"s_cselect_b32 s{sSL}, s{sRB}, s{sSL}"]
                if s == 0 and j == 7: x3 = kvaddr() + [f"s_waitcnt vmcnt({5 if dma else 0})"]
                if last and s == 0 and j >= 3: x3 = [f"v_add_u32 v{t3}, s{sRB}, v{vKA}"] if j == 7 else []
                if last and s == 1:
                    pre = []; x3 = []
                    if j >= 2: x1 = [f"ds_write_b128 v{t3}, {vr(O(j-2)+4*k,4)} offset:{LDS_AX + (j-2)*3072 + k*1024}" for k in range(3)]
            M5 = PV((j-1) % 8, s if j > 0 else 1-s, 0)
            Ms = {"1": M1, "2": M2, "3": M3, "4": M4, "5": M5}
            ie = ic = 0
            for ch in pat:
                if ch == "e": a(e[ie]); ie += 1
                elif ch == "c": a(c[ic]); ic += 1
                elif ch == "a":
                    for x in x1: a(x)
                elif ch == "b":
                    for x in x3: a(x)
                elif ch == "d":
                    for x in x4: a(x)
                    if j == 7 and s == 1 and lab:
                        a(f"s_sub_u32 s{sCnt}, s{sCnt}, 1")
                        a(f"s_cmp_lg_u32 s{sCnt}, {2 if (kv == 'ring' and dma) else 0}")
                else:
                    if ch == "1":
                        for x in pre: a(x)
                    a(Ms[ch])
            assert ie == 16 and ic == 8
      if lab: a(f"s_cbranch_scc1 {lab}")
    abody(f"{name}_AL", True)
    abody(None, False)
    abody(None, False, True)
    if eprio: a("s_setprio 3")
    lds_arrive(a, vCNT, t0, 0)
    a.nop(1)
    if "5" in pat: a(PV(7, 1, 0))
    a(PV(7, 1, 1))
    a.stamp(4); a.rstamp(1)
    for p in range(1, 4):
        a(f"s_xor_b32 s{sT1}, s{sW}, {p}")
        a(f"s_mul_i32 s{sT1}, s{sT1}, 18432")
        a(f"s_add_u32 s{sT1}, s{sT1}, {LDS_AX + (3^p)*6144}")
        a(f"v_add_u32 v{t0+p}, s{sT1}, v{vKA}")
    a(f"s_lshl_b32 s{sT0}, s{sQB}, 2")
    a(f"s_add_u32 s{sT3}, s{sT0}, s{sW}")
    a(f"s_lshl_b32 s{sT0}, s{sT3}, 7")
    a(f"s_add_u32 s{sT0}, s{sT0}, s{sHD}")
    a(f"s_lshl_b32 s{sT1}, s{sT0}, 7")
    a(f"s_add_u32 s{sT1}, s{sT1}, {WS_OL}")
    a(f"s_lshl_b32 s{sT0}, s{sT0}, 9")
    a(f"s_add_u32 s{sT0}, s{sT0}, {WS_O}")
    a(f"v_bfe_u32 v{vV}, v{vL}, 4, 1")
    a(f"v_and_b32 v{vKB}, 15, v{vL}")
    a(f"v_lshlrev_b32 v{vKA}, 4, v{vKB}")
    a(f"v_lshl_add_u32 v{vKA}, v{vH}, 8, v{vKA}")
    a(f"v_lshl_add_u32 v{vKA}, v{vV}, 14, v{vKA}")
    a(f"v_lshlrev_b32 v{vKB}, 3, v{vKB}")
    a(f"v_lshl_add_u32 v{vKB}, v{vV}, 12, v{vKB}")
    a(f"s_lshl_b32 s{sKV}, s{sT3}, 5")
    a(f"s_add_u32 s{sKV}, s{sKV}, s{sHD}")
    a(f"s_lshl_b32 s{sKV}, s{sKV}, {FS}")
    a(f"s_add_u32 s{sKV}, s{sKV}, {WS_OF2}")
    lds_wait(a, vCNT, t0, sT2, 0, 4, f"{name}_s0")
    a.stamp(5); a.rstamp(2)
    Rb = 12
    for p in range(1, 4):
        for jj in range(2):
            for k in range(3):
                a(f"ds_read_b128 {vr(Rb + ((p-1)*6 + jj*3 + k)*4, 4)}, v{t0+p} offset:{jj*3072 + k*1024}")
    for p in range(1, 4):
        a(f"s_waitcnt lgkmcnt({(3-p)*6})")
        for jj in range(2):
            for k in range(0, 12, 2):
                A = O(6+jj) + k; B = Rb + ((p-1)*6 + jj*3)*4 + k
                a(f"v_pk_add_f32 {vr(A,2)}, {vr(A,2)}, {vr(B,2)}")
    u = 88
    for jj in range(2):
        a(f"v_mov_b32 v{u+2*jj}, v{O(6+jj)+8}")
        a(f"v_mov_b32 v{u+2*jj+1}, v{O(6+jj)+8}")
    a.nop(1)
    for jj in range(2):
        a(f"v_permlane32_swap_b32 v{u+2*jj}, v{u+2*jj+1}")
    for jj in range(2):
        a(f"v_rcp_f32 v{u+2*jj}, v{u+2*jj+1}")
    a.nop(1)
    for jj in range(2):
        a(f"v_mov_b32 v{u+2*jj+1}, v{u+2*jj}")
    for jj in range(2):
        for k in range(0, 12, 2):
            A = O(6+jj) + k
            a(f"v_pk_mul_f32 {vr(A,2)}, {vr(A,2)}, {vr(u+2*jj,2)}")
        PP = 96 + 8*jj
        for k in range(6):
            a(f"v_cvt_pk_bf16_f32 v{PP+k}, v{O(6+jj)+2*k}, v{O(6+jj)+2*k+1}")
        a(f"buffer_store_dwordx4 {vr(PP,4)}, v{vKA}, {sr(WS,4)}, s{sT0} offen sc1")
        a(f"s_mov_b64 exec, {sr(sE_LO,2)}")
        a(f"buffer_store_dwordx2 {vr(PP+4,2)}, v{vKB}, {sr(WS,4)}, s{sT1} offen sc1")
        a(f"s_mov_b64 exec, -1")
        if jj == 0:
            a(f"s_add_u32 s{sT0}, s{sT0}, 32768")
            a(f"s_add_u32 s{sT1}, s{sT1}, 8192")
    a.stamp(6); a.rstamp(3)
    a("s_waitcnt vmcnt(0)")
    a.rstamp(4)
    raise_flag(t0, t2, sKV)
    if diag: a("s_waitcnt vmcnt(0)")
    a.stamp(7); a.stamp(9, True)
    a.dump_stamps(10, WS, sWV, WS_DIAG)
    a("s_endpgm")

    a.label(f"{name}_FB")
    def kload():
        K = KVS(1)
        return [f"buffer_load_dwordx4 {vr(K,4)}, v{vKA}, {sr(WS,4)}, s{sKV0} offen sc1",
                f"s_mov_b64 exec, {sr(sE_LO,2)}",
                f"buffer_load_dwordx2 {vr(K+12,2)}, v{vKB}, {sr(WS,4)}, s{sKV0} offen offset:1024 sc1",
                f"s_mov_b64 exec, -1",
                f"s_add_u32 s{sKV0}, s{sKV0}, {KVT}"]
    MX = 128
    lds_sync(a, vCNT, t0, sT0, 20, 4, f"{name}_s5")
    a(f"s_mov_b64 exec, {sr(sE_HI,2)}")
    for j in range(8): a(f"v_mov_b32 v{Q(j)+4}, 0")
    for s in range(2):
        a(f"v_mov_b32 v{KVS(s)+12}, 0x3f803f80")
        a(f"v_mov_b32 v{KVS(s)+13}, 0x3f80")
    a("s_mov_b64 exec, -1")
    for j in range(8): a(f"v_mov_b32 v{MX+j}, 0xff800000")
    a(f"s_mov_b32 s{sCnt}, 16")
    a.label(f"{name}_FL")
    for x in kload(): a(x)
    a("s_waitcnt vmcnt(0)")
    for j in range(8):
        for x in QK(j, 1): a(x)
        a.nop(12)
        for k in range(0, 16, 2):
            a(f"v_max3_f32 v{MX+j}, v{MX+j}, v{S(j)+k}, v{S(j)+k+1}")
    a(f"s_sub_u32 s{sCnt}, s{sCnt}, 1")
    a(f"s_cmp_lg_u32 s{sCnt}, 0")
    a(f"s_cbranch_scc1 {name}_FL")
    for j in range(8):
        a(f"v_mov_b32 v{MX+8+j}, v{MX+j}")
    a.nop(1)
    for j in range(8):
        a(f"v_permlane32_swap_b32 v{MX+j}, v{MX+8+j}")
    for j in range(8):
        a(f"v_max_f32 v{MX+j}, v{MX+j}, v{MX+8+j}")
    a(f"s_lshl_b32 s{sT3}, s{sW}, 1")
    a(f"v_lshlrev_b32 v{t2}, 2, v{vI}")
    for j in range(8):
        a(f"s_xor_b32 s{sT0}, s{sT3}, {j ^ 6}")
        a(f"s_lshl_b32 s{sT0}, s{sT0}, 7")
        if LDS_MX: a(f"s_add_u32 s{sT0}, s{sT0}, {LDS_MX}")
        a(f"v_add_u32 v{MX+8+j}, s{sT0}, v{t2}")
    for j in range(8):
        a(f"v_add_u32 v{t0}, s{sRB}, v{MX+8+j}")
        a(f"ds_write_b32 v{t0}, v{MX+j}")
    lds_sync(a, vCNT, t0, sT0, 8, 4, f"{name}_s2")
    for j in range(8):
        for ww in range(4):
            a(f"ds_read_b32 v{MX+16+4*j+ww}, v{MX+8+j} offset:{ww*18432}")
    a("s_waitcnt lgkmcnt(0)")
    a(f"s_mov_b64 exec, {sr(sE_HI,2)}")
    for j in range(8):
        b = MX+16+4*j
        a(f"v_max3_f32 v{b}, v{b}, v{b+1}, v{b+2}")
        a(f"v_max_f32 v{b}, v{b}, v{b+3}")
        a(f"v_sub_f32 v{b}, 0, v{b}")
        a(f"v_and_b32 v{b+1}, 0xffff0000, v{b}")
        a(f"v_sub_f32 v{b}, v{b}, v{b+1}")
        a(f"v_and_b32 v{b+2}, 0xffff0000, v{b}")
        a(f"v_sub_f32 v{b}, v{b}, v{b+2}")
        a(f"v_lshrrev_b32 v{b+1}, 16, v{b+1}")
        a(f"v_or_b32 v{Q(j)+4}, v{b+1}, v{b+2}")
        a(f"v_lshrrev_b32 v{Q(j)+5}, 16, v{b}")
    a("s_mov_b64 exec, -1")
    zeroO()
    for x in kvaddr(): a(x)
    a(f"s_branch {name}_M")
    rs = a.rstamp if not rt2 else (lambda i: None)
    a.label(f"{name}_G")
    a(f"s_setprio {prio_va}")
    common()
    WO, OUT = 52, 56
    sDT, sFT, sHb, sWo, sM, sCnt, sDQ, sFQ, sST2, sDT2, sU, sW2, sFL = 32, 33, 34, 36, 38, 39, 40, 41, 42, 43, 44, 45, 46
    sWO, sXO = 24, 25
    sUo, sUf = 35, 47
    vDA0, vDA1, vBO = 5, 6, 7
    t0, t1, t2, t3 = 10, 11, 12, 13
    vXO, vLA, XB = 14, 19, 24
    Z = 36
    vR = 40
    vQ = 44
    vD0, vD1, vFL, vH1 = 48, 49, 50, 51
    vDWp, vB2, vRMp = 52, 57, 62
    AF = lambda s: 64 + 16*s
    BF = lambda s: 96 + 16*s
    UF = lambda s: 96 + 20*s
    ACC = 176
    BI = 240
    assert 96 + 16*R1 <= 176 and 96 + 20*R2_ <= 176 and R1*4096 <= GREG and R2_*4096 <= GREG
    a(f"s_mul_i32 s{sT0}, s{sJ}, 52")
    a(f"s_lshr_b32 s{sT0}, s{sT0}, 8")
    a(f"s_mul_i32 s{sT1}, s{sT0}, 5")
    a(f"s_sub_u32 s{sT1}, s{sJ}, s{sT1}")
    a(f"s_and_b32 s{sT2}, s{sXC}, 1")
    a(f"s_mul_i32 s{sT3}, s{sT2}, 5")
    a(f"s_add_u32 s{sDT}, s{sT1}, s{sT3}")
    a(f"s_lshl_b32 s{sT2}, s{sT2}, 2")
    a(f"s_lshr_b32 s{sT3}, s{sJ}, 3")
    a(f"s_add_u32 s{sDT2}, s{sT2}, s{sT3}")
    a(f"s_lshr_b32 s{sT2}, s{sXC}, 1")
    a(f"s_mul_i32 s{sT3}, s{sT2}, 6")
    a(f"s_add_u32 s{sFT}, s{sT0}, s{sT3}")
    a(f"s_lshl_b32 s{sT2}, s{sT2}, 3")
    a(f"s_and_b32 s{sT3}, s{sJ}, 7")
    a(f"s_add_u32 s{sST2}, s{sT2}, s{sT3}")
    a(f"s_and_b32 s{sDQ}, s{sW}, 1")
    a(f"s_lshr_b32 s{sFQ}, s{sW}, 1")
    a(f"s_lshl_b32 s{sT0}, s{sDT}, 1")
    a(f"s_add_u32 s{sT0}, s{sT0}, s{sDQ}")
    a(f"s_lshl_b32 s{sHb}, s{sT0}, 17")
    a(f"s_lshl_b32 s{sT3}, s{sW}, 14")
    a(f"s_add_u32 s{sHb}, s{sHb}, s{sT3}")
    a(f"s_add_u32 s{sHb}, s{sHb}, {WS_HT - 131072}")
    a(f"s_mul_i32 s{sUo}, s{sT0}, {2*48*1024}")
    a(f"s_lshl_b32 s{sT1}, s{sFT}, 1")
    a(f"s_add_u32 s{sT1}, s{sT1}, s{sFQ}")
    a(f"s_lshl_b32 s{sT2}, s{sT1}, 10")
    a(f"s_add_u32 s{sUo}, s{sUo}, s{sT2}")
    a(f"s_add_u32 s{sUo}, s{sUo}, {WS_U}")
    a(f"s_lshl_b32 s48, s{sT1}, 6")
    a(f"s_mul_i32 s{sUf}, s{sDT}, 24")
    a(f"s_add_u32 s{sUf}, s{sUf}, s{sFT}")
    a(f"s_lshl_b32 s{sUf}, s{sUf}, 7")
    a(f"s_add_u32 s{sUf}, s{sUf}, {WS_UFL}")
    a(f"s_mul_i32 s{sWo}, s{sW}, {512*3072}")
    a(f"s_lshl_b32 s{sT0}, s{sFT}, 7")
    a(f"s_add_u32 s{sWo}, s{sWo}, s{sT0}")
    a(f"s_mul_i32 s{sM}, s{sW}, {GREG}")
    a(f"s_add_u32 s{sM}, s{sM}, {LDS_G}")
    a(f"s_mul_i32 s{sU}, s{sDT2}, {5*48*1024}")
    a(f"s_mul_i32 s{sT0}, s{sW}, {12*1024}")
    a(f"s_add_u32 s{sU}, s{sU}, s{sT0}")
    a(f"s_add_u32 s{sU}, s{sU}, {WS_U}")
    a(f"s_mul_i32 s{sW2}, s{sW}, {384*4096}")
    a(f"s_lshl_b32 s{sT0}, s{sST2}, 7")
    a(f"s_add_u32 s{sW2}, s{sW2}, s{sT0}")
    a(f"s_mul_i32 s{sT0}, s{sDT2}, 5")
    a(f"s_lshr_b32 s{sT0}, s{sT0}, 2")
    a(f"s_mul_i32 s{sT0}, s{sT0}, 24")
    a(f"s_mul_i32 s{sT1}, s{sW}, 6")
    a(f"s_add_u32 s{sT0}, s{sT0}, s{sT1}")
    a(f"s_lshl_b32 s{sT0}, s{sT0}, 7")
    a(f"s_add_u32 s{sFL}, s{sT0}, {WS_UFL}")
    a(f"s_mul_i32 s{sT1}, s{sDT2}, 160")
    a(f"s_mul_i32 s{sWO}, s{sW}, {160*1280}")
    a(f"s_add_u32 s{sWO}, s{sWO}, s{sT1}")
    a(f"s_mul_i32 s{sXO}, s{sST2}, {64*1280}")
    a(f"s_add_u32 s{sXO}, s{sXO}, s{sT1}")
    a(f"v_lshlrev_b32 v{vBO}, 4, v{vL}")
    a(f"s_lshl_b32 s{sT0}, s{sDQ}, 18")
    a(f"s_sub_u32 s{sT0}, 262144, s{sT0}")
    a(f"v_add_u32 v{vH1}, s{sT0}, v{vBO}")
    a(f"v_add_u32 v8, 131072, v{vBO}")
    a(f"v_lshrrev_b32 v{t0}, 3, v{vL}")
    a(f"v_and_b32 v{t2}, 7, v{vL}")
    a(f"v_bfe_u32 v{t1}, v{vL}, 4, 2")
    a(f"v_lshlrev_b32 v{t3}, 1, v{t1}")
    a(f"v_xor_b32 v{t3}, v{t3}, v{t2}")
    a(f"v_lshlrev_b32 v{t3}, 4, v{t3}")
    a(f"v_lshl_add_u32 v{vD0}, v{t0}, 12, v{t3}")
    a(f"v_add_u32 v{vD1}, {8*4096}, v{vD0}")
    a(f"v_and_b32 v{t1}, 1, v{t1}")
    a(f"v_lshlrev_b32 v{t1}, 1, v{t1}")
    a(f"v_xor_b32 v{t1}, v{t1}, v{t2}")
    a(f"v_mul_u32_u24 v{t0}, 3072, v{t0}")
    a(f"v_lshl_add_u32 v{vDA0}, v{t1}, 4, v{t0}")
    a(f"v_xor_b32 v{t1}, 4, v{t1}")
    a(f"v_lshl_add_u32 v{vDA1}, v{t1}, 4, v{t0}")
    a(f"v_add_u32 v{vDA1}, {8*3072}, v{vDA1}")
    a(f"v_and_b32 v{t2}, 3, v{vL}")
    a(f"v_lshlrev_b32 v{t2}, 3, v{t2}")
    a(f"v_add_u32 v{t2}, s{sM}, v{t2}")
    a(f"v_bfe_u32 v{t0}, v{vL}, 2, 2")
    a(f"v_lshrrev_b32 v{t1}, 4, v{vL}")
    a(f"v_bfe_u32 v{t3}, v{vL}, 3, 2")
    a(f"v_lshl_add_u32 v9, v{t1}, 2, v{t0}")
    a(f"v_lshl_add_u32 v9, v9, 7, v{t2}")
    for b in range(4):
        a(f"v_xor_b32 v{vQ+b}, {b}, v{t3}")
        a(f"v_lshl_add_u32 v{vQ+b}, v{vQ+b}, 5, v9")
    a(f"v_lshl_add_u32 v9, v{t1}, 3, v{t0}")
    a(f"v_lshl_add_u32 v9, v9, 7, v{t2}")
    a(f"s_lshl_b32 s{sT0}, s{sFQ}, 1")
    a(f"v_xor_b32 v{t3}, s{sT0}, v{t3}")
    for b in range(4):
        a(f"v_xor_b32 v{vR+b}, {b}, v{t3}")
        a(f"v_lshl_add_u32 v{vR+b}, v{vR+b}, 5, v9")
    a(f"v_mul_u32_u24 v9, 20, v{vH}")
    a(f"v_and_b32 v{t1}, 1, v{t1}")
    a(f"v_lshl_add_u32 v9, v{t1}, 2, v9")
    a(f"v_add_u32 v9, v9, v{t0}")
    a(f"v_mul_u32_u24 v9, 160, v9")
    a(f"v_add_u32 v{vRMp}, v9, v{t2}")
    a(f"v_mul_u32_u24 v9, 40, v{t1}")
    a(f"v_add3_u32 v9, v9, v{t0}, 16")
    a(f"v_mul_u32_u24 v9, 160, v9")
    a(f"v_add_u32 v{vRMp+1}, v9, v{t2}")
    a(f"v_cmp_le_u32 vcc, 6, v{vL}")
    a(f"v_lshlrev_b32 v{vFL}, 7, v{vL}")
    a(f"v_add_u32 v{t0}, {18*128}, v{vFL}")
    a(f"v_cndmask_b32 v{vFL}, v{vFL}, v{t0}, vcc")
    for j in range(5):
        a(f"v_add_u32 v{t0}, {64*j}, v{vL}")
        a(f"v_mul_u32_u24 v{t1}, 6554, v{t0}")
        a(f"v_lshrrev_b32 v{t1}, 16, v{t1}")
        a(f"v_mul_u32_u24 v{t2}, {1280-160}, v{t1}")
        a(f"v_lshl_add_u32 v{vDWp+j}, v{t0}, 4, v{t2}")
    a(f"v_and_b32 v{t3}, 0xff, v0")
    for k in range(5):
        a(f"v_add_u32 v{t0}, {256*k}, v{t3}")
        a(f"v_mul_u32_u24 v{t1}, 3277, v{t0}")
        a(f"v_lshrrev_b32 v{t1}, 16, v{t1}")
        a(f"v_mul_u32_u24 v{t2}, {1280-160}, v{t1}")
        a(f"v_lshl_add_u32 v{vXO+k}, v{t0}, 3, v{t2}")
        a(f"v_lshlrev_b32 v{t2}, 4, v{t1}")
        a(f"v_lshl_add_u32 v{t2}, v{t0}, 4, v{t2}")
        a(f"v_add_u32 v{vLA+k}, {LDS_G}, v{t2}")
        a(f"v_lshlrev_b32 v{vB2+k}, 1, v{t1}")
    a(f"v_lshrrev_b32 v{t3}, 4, v{vL}")
    a(f"v_lshlrev_b32 v{t3}, 3, v{t3}")
    for k in range(4): a(f"v_mov_b32 v{Z+k}, 0")
    srd(a, W1, 72, 2048*1536*2)
    srd(a, B1, 74, 1536*2)
    srd(a, W2, 76, 1536*2048*2)
    srd(a, B2, 78, 2048*2)
    srd(a, X, 4, 2048*640*2)
    srd(a, WO, 8, 640*640*2)
    srd(a, OUT, 50, 2048*640*2)
    if gearly:
        a("s_waitcnt lgkmcnt(0)")
        st2(7)
        a("s_barrier")
    poll64(f"{name}_PH", vPH, vPHo, sPH, 0xf, 0, 2, sCnt)
    if ghold: lds_wait(a, vCNT, 112, sT0, 28, 4, f"{name}_s7")
    a(f"s_cmp_ge_u32 s{sJ}, 30")
    a(f"s_cbranch_scc1 {name}_G2")
    M16 = "v_mfma_f32_16x16x32_bf16"
    def zacc(n):
        for k in range(n): a(f"v_mfma_f32_32x32x16_bf16 {vr(ACC+16*k,16)}, {vr(Z,4)}, {vr(Z,4)}, 0")
    def gload(slot):
        B = BF(slot)
        return [f"s_add_u32 m0, s{sM}, {slot*4096}",
                f"s_add_u32 s{sT0}, s{sHb}, 65536",
                f"buffer_load_dwordx4 v{vDA0}, {sr(W1,4)}, s{sWo} offen lds",
                f"s_add_u32 m0, s{sM}, {slot*4096+1024}",
                f"buffer_load_dwordx4 {vr(B,4)}, v8, {sr(WS,4)}, s{sHb} offen sc1",
                f"buffer_load_dwordx4 v{vDA1}, {sr(W1,4)}, s{sWo} offen lds",
                f"s_add_u32 s{sWo}, s{sWo}, {16*3072}",
                f"s_add_u32 m0, s{sM}, {slot*4096+2048}",
                f"buffer_load_dwordx4 {vr(B+4,4)}, v8, {sr(WS,4)}, s{sT0} offen sc1",
                f"buffer_load_dwordx4 v{vDA0}, {sr(W1,4)}, s{sWo} offen lds",
                f"s_add_u32 m0, s{sM}, {slot*4096+3072}",
                f"buffer_load_dwordx4 {vr(B+8,4)}, v{vH1}, {sr(WS,4)}, s{sHb} offen sc1",
                f"buffer_load_dwordx4 v{vDA1}, {sr(W1,4)}, s{sWo} offen lds",
                f"buffer_load_dwordx4 {vr(B+12,4)}, v{vH1}, {sr(WS,4)}, s{sT0} offen sc1",
                f"s_add_u32 s{sWo}, s{sWo}, {16*3072}",
                f"s_add_u32 s{sHb}, s{sHb}, 1024"]
    for i in range(2):
        a(f"buffer_load_dwordx2 {vr(BI+2*i,2)}, v{t3}, {sr(B1,4)}, s48 offen offset:{32*i}")
    a(f"s_setprio {prio_mm}")
    vm = VM(a)
    def g1load(g):
        for x in gload(g % R1): a(x)
        vm.issue(g, 8)
    def tr(base, g, Rn, second):
        for b in range(4):
            for h in range(2):
                a(f"ds_read_b64_tr_b16 {vr(AF(g%2)+4*b+2*h,2)}, v{base+b} offset:{(g%Rn)*4096+h*second}")
    for g in range(R1-1): g1load(g)
    zacc(4)
    a.stamp(1)
    vm.wait(0)
    tr(vR, 0, R1, 512)
    def C1(fb, db): return ACC + 16*(2*(fb >> 1) + (db >> 1)) + 4*(2*(db & 1) + (fb & 1))
    for g in range(16):
        if g + R1 - 1 < 16: g1load(g + R1 - 1)
        if g < 15:
            vm.wait(g+1)
            tr(vR, g+1, R1, 512)
            a("s_waitcnt lgkmcnt(8)")
        else:
            a("s_waitcnt lgkmcnt(0)")
        for fb in range(4):
            for db in range(4):
                if 'M' not in xp: a(f"{M16} {vr(C1(fb,db),4)}, {vr(AF(g%2)+4*fb,4)}, {vr(BF(g%R1)+4*db,4)}, {vr(C1(fb,db),4)}")
    a.stamp(2)
    a(f"s_setprio {prio_va}")
    a(f"v_add_u32 v{t0}, s{sM}, v{vBO}")
    for p in range(1, 4):
        a(f"s_xor_b32 s{sT1}, s{sW}, {p}")
        a(f"s_mul_i32 s{sT1}, s{sT1}, {GREG}")
        a(f"s_add_u32 s{sT1}, s{sT1}, {LDS_G + (p-1)*4096}")
        a(f"v_add_u32 v{t0+p}, s{sT1}, v{vBO}")
    for p in range(1, 4):
        for k in range(4):
            a(f"ds_write_b128 v{t0}, {vr(ACC+16*p+4*k,4)} offset:{(p-1)*4096+k*1024}")
    lds_arrive(a, vCNT, t0, 4)
    BU = 64
    for i in range(4):
        a(f"v_lshlrev_b32 v{BU+2*i}, 16, v{BI+i}")
        a(f"v_and_b32 v{BU+2*i+1}, 0xffff0000, v{BI+i}")
    for k in range(0, 16, 2):
        a(f"v_pk_add_f32 {vr(ACC+k,2)}, {vr(ACC+k,2)}, {vr(BU+(k&7),2)}")
    k0 = -2*math.sqrt(2/math.pi)*math.log2(math.e)
    a(f"v_mov_b32 v{BU}, {hexf(k0*0.044715)}")
    a(f"v_mov_b32 v{BU+1}, {hexf(k0*0.044715)}")
    a(f"v_mov_b32 v{BU+2}, {hexf(k0)}")
    a(f"v_mov_b32 v{BU+3}, {hexf(k0)}")
    lds_wait(a, vCNT, t0, sT1, 4, 4, f"{name}_s1")
    RB = 96
    for p in range(1, 4):
        for k in range(4):
            a(f"ds_read_b128 {vr(RB+16*(p-1)+4*k,4)}, v{t0+p} offset:{k*1024}")
    for p in range(1, 4):
        a(f"s_waitcnt lgkmcnt({(3-p)*4})")
        for k in range(0, 16, 2):
            a(f"v_pk_add_f32 {vr(ACC+k,2)}, {vr(ACC+k,2)}, {vr(RB+16*(p-1)+k,2)}")
    lds_arrive(a, vCNT, t0, 12)
    G = RB
    for k in range(0, 16, 2): a(f"v_pk_mul_f32 {vr(G+k,2)}, {vr(ACC+k,2)}, {vr(ACC+k,2)}")
    for k in range(0, 16, 2): a(f"v_pk_fma_f32 {vr(G+k,2)}, {vr(G+k,2)}, {vr(BU,2)}, {vr(BU+2,2)}")
    for k in range(0, 16, 2): a(f"v_pk_mul_f32 {vr(G+k,2)}, {vr(G+k,2)}, {vr(ACC+k,2)}")
    for k in range(16): a(f"v_exp_f32 v{G+k}, v{G+k}")
    for k in range(0, 16, 2): a(f"v_pk_add_f32 {vr(G+k,2)}, {vr(G+k,2)}, 1.0 op_sel_hi:[1,0]")
    for k in range(16): a(f"v_rcp_f32 v{G+k}, v{G+k}")
    for k in range(0, 16, 2): a(f"v_pk_mul_f32 {vr(G+k,2)}, {vr(G+k,2)}, {vr(ACC+k,2)}")
    for k in range(8): a(f"v_cvt_pk_bf16_f32 v{G+16+k}, v{G+2*k}, v{G+2*k+1}")
    a(f"s_add_u32 s{sT0}, s{sUo}, {48*1024}")
    a(f"buffer_store_dwordx4 {vr(G+16,4)}, v{vBO}, {sr(WS,4)}, s{sUo} offen sc1")
    a(f"buffer_store_dwordx4 {vr(G+20,4)}, v{vBO}, {sr(WS,4)}, s{sT0} offen sc1")
    lds_wait(a, vCNT, t0, sT1, 12, 4, f"{name}_s3")
    vm = VM(a)
    def w2dma(g):
        slot = g % R2_
        for k in range(4):
            a(f"s_add_u32 m0, s{sM}, {slot*4096+k*1024}")
            a("s_nop 0")
            a(f"buffer_load_dwordx4 v{vD0+(k&1)}, {sr(W2,4)}, s{sW2} offen lds")
            if k & 1: a(f"s_add_u32 s{sW2}, s{sW2}, {16*4096}")
        vm.issue(g, 4)
    for g in range(R2_-1): w2dma(g)
    a(f"s_waitcnt vmcnt({4*(R2_-1)})")
    last_arriver(vCNT, t1, sT1, 52, f"{name}_UR")
    raise_flag(t2, t1, sUf)
    a.label(f"{name}_UR")
    a.stamp(3)
    a(f"s_branch {name}_G3")
    a.label(f"{name}_G2")
    for g in range(R2_-1): w2dma(g)
    a.label(f"{name}_G3")
    def uload(g):
        U = UF(g % R2_)
        for db in range(5):
            if db:
                a(f"s_add_u32 s{sT0}, s{sU}, {db*48*1024}")
            a(f"buffer_load_dwordx4 {vr(U+4*db,4)}, v{vBO}, {sr(WS,4)}, s{sT0 if db else sU} offen sc1")
        a(f"s_add_u32 s{sU}, s{sU}, 1024")
        vm.issue(g, 5)
    zacc(5)
    a(f"s_lshl_b32 s{sT3}, s{sST2}, 7")
    for k in range(5):
        a(f"buffer_load_dwordx2 {vr(XB+2*k,2)}, v{vXO+k}, {sr(X,4)}, s{sXO} offen")
        a(f"buffer_load_ushort v{XB+10+k}, v{vB2+k}, {sr(B2,4)}, s{sT3} offen")
    def poll(lab, voff, soff, lo, hi):
        o = lab.endswith('O')
        poll64(lab, 2 if o else 8, voff, soff, lo, hi, slpo if o else slp, sCnt)
        vm.q = []
    poll(f"{name}_PU", vFL, sFL, 0xfff, 0)
    a.stamp(4)
    a(f"s_setprio {prio_mm}")
    for g in range(R2_-1): uload(g)
    def C(db, sb): return ACC + 4*(4*db + sb)
    tr(vQ, 0, R2_, 2048)
    for g in range(12):
        if g + R2_ - 1 < 12:
            w2dma(g + R2_ - 1); uload(g + R2_ - 1)
        if g == 0: vm.wait(0)
        if g < 11:
            vm.wait(g+1)
            tr(vQ, g+1, R2_, 2048)
            a("s_waitcnt lgkmcnt(8)")
        else:
            a("s_waitcnt lgkmcnt(0)")
        for db in range(5):
            for sb in range(4):
                if 'M' not in xp: a(f"{M16} {vr(C(db,sb),4)}, {vr(UF(g%R2_)+4*db,4)}, {vr(AF(g%2)+4*sb,4)}, {vr(C(db,sb),4)}")
    a.stamp(5); rs(0)
    a(f"s_setprio 2")
    def wdma(jj):
        a(f"s_add_u32 m0, s{sM}, {jj*1024}")
        if jj % 5 == 0 and jj: a(f"s_add_u32 s{sWO}, s{sWO}, {32*1280}")
        else: a("s_nop 0")
        a(f"buffer_load_dwordx4 v{vDWp + jj % 5}, {sr(WO,4)}, s{sWO} offen lds")
        if jj == 12: a(f"s_add_u32 s{sWO}, s{sWO}, {16*1280}")
    for jj in range(13): wdma(jj)
    vBB = (5, 6, 8, 9, 34)
    for k in range(5): a(f"v_lshlrev_b32 v{vBB[k]}, 16, v{XB+10+k}")
    vRM, vRL, vOL, vOF = t0, t1, t2, t3
    a(f"v_mov_b32 v{vRM}, v{vRMp}")
    a(f"v_mov_b32 v{vRL}, v{vRMp+1}")
    a(f"v_and_b32 v{vOL}, 15, v{vL}")
    a(f"v_lshlrev_b32 v{vOL}, 3, v{vOL}")
    a(f"v_lshrrev_b32 v{vOF}, 4, v{vL}")
    a(f"v_lshl_add_u32 v{vOL}, v{vOF}, 8, v{vOL}")
    a(f"v_lshlrev_b32 v{vOF}, 7, v{vL}")
    WA = lambda k: 116 + 20*k
    OFr = lambda n: 36 + 16*n
    def trw(dst, k):
        for db in range(5):
            for aa in range(2):
                if k < 2: a(f"ds_read_b64_tr_b16 {vr(dst+4*db+2*aa,2)}, v{vRM} offset:{(40*k+8*aa)*160+db*32}")
                else: a(f"ds_read_b64_tr_b16 {vr(dst+4*db+2*aa,2)}, v{vRL} offset:{20*aa*160+db*32}")
    sO, sOL, sOF = sHb, sUo, sU
    a(f"s_lshl_b32 s{sT0}, s{sST2}, 7")
    a(f"s_lshl_b32 s{sT1}, s{sW}, 3")
    a(f"s_add_u32 s{sT0}, s{sT0}, s{sT1}")
    a(f"s_lshl_b32 s{sOL}, s{sT0}, 7")
    a(f"s_add_u32 s{sOL}, s{sOL}, {WS_OL}")
    a(f"s_lshl_b32 s{sO}, s{sT0}, 9")
    a(f"s_add_u32 s{sO}, s{sO}, {WS_O}")
    a(f"s_lshl_b32 s{sT2}, s{sST2}, 5")
    a(f"s_add_u32 s{sT1}, s{sT1}, s{sT2}")
    a(f"s_lshl_b32 s{sT1}, s{sT1}, 7")
    a(f"s_add_u32 s{sOF}, s{sT1}, {WS_OF2}")
    a("s_waitcnt vmcnt(0)")
    for k in range(3): trw(WA(k), k)
    a("s_waitcnt lgkmcnt(0)")
    for jj in range(13): wdma(jj)
    a("s_waitcnt vmcnt(0)")
    trw(96, 2)
    a("s_waitcnt lgkmcnt(0)")
    a("s_mov_b32 exec_lo, 0")
    for k in range(20): a(f"v_mov_b32 v{WA(2)+k}, v{96+k}")
    a("s_mov_b64 exec, -1")
    poll(f"{name}_PO", vOF, sOF, 0xf, 0)
    a.stamp(6); rs(1)
    def oload(n):
        for sb in range(4):
            if n < 4:
                a(f"s_add_u32 s{sT0}, s{sO}, {n*1024 + sb*16384}")
                a(f"buffer_load_dwordx4 {vr(OFr(n)+4*sb,4)}, v{vBO}, {sr(WS,4)}, s{sT0} offen sc1")
                vm.issue(n, 1)
            else:
                a(f"s_add_u32 s{sT0}, s{sOL}, {sb*4096}")
                a(f"buffer_load_dwordx2 {vr(OFr(n)+4*sb,2)}, v{vOL}, {sr(WS,4)}, s{sT0} offen sc1")
                a(f"buffer_load_dwordx2 {vr(OFr(n)+4*sb+2,2)}, v{vOL}, {sr(WS,4)}, s{sT0} offen offset:128 sc1")
                vm.issue(n, 2)
    def ostep(n):
        if n in vm.q: vm.wait(n)
        if n == 0: rs(2)
        if n == 3: rs(3)
        if n == 4: rs(4)
        if n == 2: a("s_waitcnt lgkmcnt(10)")
        if n == 3: a("s_waitcnt lgkmcnt(0)")
        Wf = WA(n % 2) if n < 4 else WA(2)
        for db in range(5):
            for sb in range(4):
                a(f"{M16} {vr(C(db,sb),4)}, {vr(Wf+4*db,4)}, {vr(OFr(n)+4*sb,4)}, {vr(C(db,sb),4)}")
        if n < 2: trw(WA(n), n)
    a("s_mov_b64 exec, 0xf0")
    a(f"buffer_load_dwordx2 v[2:3], v{vOF}, {sr(WS,4)}, s{sOF} offen sc1")
    a("s_mov_b64 exec, -1")
    vm.issue("pb", 1)
    for n in range(2): oload(n)
    vm.wait("pb")
    a("s_mov_b64 exec, 0xf0")
    a(f"v_cmp_ne_u64 vcc, {sr(NON,2)}, v[2:3]")
    a("s_mov_b64 exec, -1")
    a.nop(4)
    a(f"s_cbranch_vccnz {name}_TB")
    q0 = list(vm.q)
    for n in range(2, 5): oload(n)
    for n in range(5): ostep(n)
    a(f"s_branch {name}_TE")
    a.label(f"{name}_TB")
    vm.q = q0
    for n in range(2): ostep(n)
    poll(f"{name}_PO2O", vOF, sOF, 0xf0, 0)
    for n in range(2, 5): oload(n)
    for n in range(2, 5): ostep(n)
    a.label(f"{name}_TE")
    a(f"v_and_b32 v{t0}, 15, v{vL}")
    a(f"v_mul_u32_u24 v{t0}, 336, v{t0}")
    a(f"v_lshrrev_b32 v{t1}, 4, v{vL}")
    a(f"v_lshl_add_u32 v{t0}, v{t1}, 4, v{t0}")
    a(f"v_add_u32 v{t0}, s{sM}, v{t0}")
    XU = 40
    for k in range(5):
        a(f"v_add_u32 v{60+k}, {2*GREG}, v{vLA+k}")
    for db in range(5):
        for sb in range(4):
            a(f"ds_write_b128 v{t0}, {vr(C(db,sb),4)} offset:{sb*16*336 + db*64}")
    lds_arrive(a, vCNT, t0, 16)
    for k in range(5):
        b = XU + 4*k
        a(f"v_lshlrev_b32 v{b}, 16, v{XB+2*k}")
        a(f"v_and_b32 v{b+1}, 0xffff0000, v{XB+2*k}")
        a(f"v_lshlrev_b32 v{b+2}, 16, v{XB+2*k+1}")
        a(f"v_and_b32 v{b+3}, 0xffff0000, v{XB+2*k+1}")
        for i in range(4): a(f"v_add_f32 v{b+i}, v{b+i}, v{vBB[k]}")
    rs(5)
    lds_wait(a, vCNT, t0, sT1, 16, 4, f"{name}_s4")
    rs(6)
    RB = 68
    for k in range(5):
        a(f"ds_read_b128 {vr(RB+16*k,4)}, v{vLA+k}")
        a(f"ds_read_b128 {vr(RB+16*k+4,4)}, v{vLA+k} offset:{GREG}")
        a(f"ds_read_b128 {vr(RB+16*k+8,4)}, v{60+k}")
        a(f"ds_read_b128 {vr(RB+16*k+12,4)}, v{60+k} offset:{GREG}")
    for k in range(5):
        b = XU + 4*k; r = RB + 16*k
        a(f"s_waitcnt lgkmcnt({min(15, 4*(4-k))})")
        for i in range(0, 4, 2):
            a(f"v_pk_add_f32 {vr(r+i,2)}, {vr(r+i,2)}, {vr(r+4+i,2)}")
            a(f"v_pk_add_f32 {vr(r+8+i,2)}, {vr(r+8+i,2)}, {vr(r+12+i,2)}")
            a(f"v_pk_add_f32 {vr(b+i,2)}, {vr(b+i,2)}, {vr(r+i,2)}")
            a(f"v_pk_add_f32 {vr(b+i,2)}, {vr(b+i,2)}, {vr(r+8+i,2)}")
        a(f"v_cvt_pk_bf16_f32 v{b}, v{b}, v{b+1}")
        a(f"v_cvt_pk_bf16_f32 v{b+1}, v{b+2}, v{b+3}")
        a(f"buffer_store_dwordx2 {vr(b,2)}, v{vXO+k}, {sr(OUT,4)}, s{sXO} offen {otf}")
    rs(7)
    if diag: a("s_waitcnt vmcnt(0)")
    a.stamp(7); a.stamp(9, True)
    a.dump_stamps(10, WS, sWV, WS_DIAG)
    a.label(f"{name}_end")
    a("s_endpgm")
    return a, dict(vgpr=256, sgpr=102, lds=LDS_TOT, grid=256, block=512)
```

```python
WS_KMAX = 0x6000
WS_QMAX = 0x4000
WS_QN   = 0x8000
WS_QA   = 0x100000
WS_QB   = 0x300000
WS_KV   = 0x400000
WS_HT   = 0x900000
WS_U    = 0xC00000
WS_O    = 0xE00000
WS_OL   = 0x1000000
WS_OFL  = 0x90000
WS_Y    = 0x1100000
WS_FLG  = 0x80000
WS_F    = 0x1200000
WS_SFL  = WS_F
WS_MFL  = WS_F + 0x8000
WS_QFL  = WS_F + 0x10000
WS_UFL  = WS_F + 0x18000
WS_OF2  = WS_F + 0x20000
WS_ST2  = WS_F + 0x40000
WS_DIAG = 0x1800000
WS_SIZE = 0x2000000
KVT = 2560
import math
QSCALE = math.log2(math.e) / math.sqrt(20.0)
import struct
def f2u(f): return struct.unpack("<I", struct.pack("<f", f))[0]
def hexf(f): return "0x%08x" % f2u(f)
```

```python
import gen, kf
NAME = "parallel_sum__mha_block__mixer_token_mlp__prompt_kernel"
def buildf(path, single=False, **kw):
    n = NAME if single else "fused_kernel"
    gen.assemble([(n,) + kf.gen_kf(n, **kw)], path, single=single)
if __name__ == "__main__":
    buildf("f.s")
    buildf("f_t1.s", touch=3)
    buildf("f_t0.s", touch=3, tpos=0)
    buildf("f_h0.s", ghold=0)
    buildf("f_33.s", R1=3, R2_=3)
    buildf("o_t1.s", single=True, touch=3)
    buildf("o_n.s", single=True)
```

```python
WS_KMAX = 0x6000
WS_QMAX = 0x4000
WS_QN   = 0x8000
WS_QA   = 0x100000
WS_QB   = 0x300000
WS_KV   = 0x400000
WS_HT   = 0x900000
WS_U    = 0xC00000
WS_O    = 0xE00000
WS_OL   = 0x1000000
WS_OFL  = 0x90000
WS_Y    = 0x1100000
WS_FLG  = 0x80000
WS_DIAG = 0x1800000
WS_SIZE = 0x2000000
KVT = 2560
import math
QSCALE = math.log2(math.e) / math.sqrt(20.0)
import struct
def f2u(f): return struct.unpack("<I", struct.pack("<f", f))[0]
def hexf(f): return "0x%08x" % f2u(f)
```

```python
from mk import *
build("m.s")
build("m_o.s", {}, dict(otf='sc1'))
build("m_on.s", {}, dict(otf='nt'))
build("m_l1.s", dict(lv=1))
build("m_l2.s", dict(lv=2))
build("m_l2p.s", dict(lv=2, per0=(3,3,3,2,0), per2=(3,3,3,5,6)))
build("m_t0.s", dict(touch=0))
```
